```python
import torch

def _softmax(x, axis=-1):
    return torch.softmax(x, dim=axis)

def _gelu(x):
    return torch.nn.functional.gelu(x, approximate='tanh')

def _silu(x):
    return torch.nn.functional.silu(x)

def _sigmoid(x):
    return torch.sigmoid(x)

def _layernorm(x, axis=-1, eps=1e-05):
    m = x.mean(dim=axis, keepdim=True)
    v = x.var(dim=axis, keepdim=True, unbiased=False)
    return (x - m) / torch.sqrt(v + eps)

def _scatter_add(tgt, idx, src, axis=0):
    return tgt.clone().index_add_(axis, idx, src)

def _segment_sum(src, seg, n):
    out = torch.zeros((n,) + src.shape[1:], dtype=src.dtype)
    return out.index_add_(0, seg, src)

def _pad(x, pw):
    flat = tuple((v for pair in reversed(pw) for v in pair))
    return torch.nn.functional.pad(x, flat)
kernel_name = 'adaLN_cond__compressed_kv_cla__mixer_token_mlp__prompt'

def setup_inputs():

    _w = lambda a: (lambda t: t.to(torch.bfloat16) if t.is_floating_point() else t)(torch.as_tensor(a))

    def _A_setup():
        B, H, Sq, Sk, D, M = (1, 32, 2048, 2048, 128, 576)
        Dc = 4 * D
        return {'x': _w((lambda *s: torch.randn(*s, dtype=torch.bfloat16) * 0.05)(B, Sq, M)), 'c_kv': _w((lambda *s: torch.randn(*s, dtype=torch.bfloat16) * 0.8)(B, Sk, Dc)), 'w_q': _w((lambda *s: torch.randn(*s, dtype=torch.bfloat16) * 1.6)(M, H, D) * M ** (-0.5)), 'w_uk': _w((lambda *s: torch.randn(*s, dtype=torch.bfloat16) * 1.6)(Dc, H, D) * Dc ** (-0.5)), 'w_uv': _w((lambda *s: torch.randn(*s, dtype=torch.bfloat16) * 0.8)(Dc, H, D) * Dc ** (-0.5)), 'w_o': _w((lambda *s: torch.randn(*s, dtype=torch.bfloat16) * 0.8)(H, D, M) * (H * D) ** (-0.5))}
    _A_in = _A_setup()

    def _B_setup():
        B, S, D, F = (1, 2048, 576, 4608)
        return {'x': _w((lambda *s: torch.randn(*s, dtype=torch.bfloat16) * 0.05)(B, S, D)), 'w1': _w((lambda *s: torch.randn(*s, dtype=torch.bfloat16) * 0.8)(S, F) * S ** (-0.5)), 'b1': _w((lambda *s: torch.randn(*s, dtype=torch.bfloat16) * 12.8)(F) * 0.02), 'w2': _w((lambda *s: torch.randn(*s, dtype=torch.bfloat16) * 0.4)(F, S) * F ** (-0.5)), 'b2': _w((lambda *s: torch.randn(*s, dtype=torch.bfloat16) * 3.2)(S) * 0.02)}
    _B_in = _B_setup()
    return {'A_x': _A_in['x'], 'A_c_kv': _A_in['c_kv'], 'A_w_q': _A_in['w_q'], 'A_w_uk': _A_in['w_uk'], 'A_w_uv': _A_in['w_uv'], 'A_w_o': _A_in['w_o'], 'B_x': _B_in['x'], 'B_w1': _B_in['w1'], 'B_b1': _B_in['b1'], 'B_w2': _B_in['w2'], 'B_b2': _B_in['b2'], 'c': _w((lambda *s: torch.randn(*s, dtype=torch.bfloat16) * 0.1)(1, 576) * 8.0), 'w_mod': _w((lambda *s: torch.randn(*s, dtype=torch.bfloat16) * 0.1)(576, 6 * 576) * 576 ** (-0.5) * 8.0)}

def reference(A_x, A_c_kv, A_w_q, A_w_uk, A_w_uv, A_w_o, B_x, B_w1, B_b1, B_w2, B_b2, c, w_mod):

    def _A_ref(x, c_kv, w_q, w_uk, w_uv, w_o):
        B, Sq, M = (x.shape[0], x.shape[1], x.shape[2])
        Sk = c_kv.shape[1]
        H, D = (w_q.shape[1], w_q.shape[2])
        q = torch.einsum('bqm,mhd->bhqd', x, w_q)
        k = torch.einsum('bkc,chd->bhkd', c_kv, w_uk)
        v = torch.einsum('bkc,chd->bhkd', c_kv, w_uv)
        scores = torch.einsum('bhqd,bhkd->bhqk', q, k) * D ** (-0.5)
        off = Sk - Sq
        qi = torch.arange(Sq)[:, None]
        kj = torch.arange(Sk)[None, :]
        cmask = kj <= qi + off
        scores = torch.where(cmask[None, None], scores, -1000000000.0)
        p = _softmax(scores, axis=-1)
        ctx = torch.einsum('bhqk,bhkd->bhqd', p, v)
        return torch.einsum('bhqd,hdm->bqm', ctx, w_o)

    def _B_ref(x, w1, b1, w2, b2):
        B, S, D = x.shape
        h = _layernorm(x, axis=-1)
        u = torch.einsum('bsd,sf->bdf', h, w1) + b1
        u = _gelu(u)
        y = torch.einsum('bdf,fs->bds', u, w2) + b2
        return (lambda x, *d: x.permute(*d))(y, 0, 2, 1)
    x = A_x
    mod = (_silu(c) @ w_mod).reshape(c.shape[0], 6, 1, -1)
    sa, ca, ga, sb, cb, gb = (mod[:, 0].clone(), mod[:, 1].clone(), mod[:, 2].clone(), mod[:, 3].clone(), mod[:, 4].clone(), mod[:, 5].clone())
    h = _layernorm(x, axis=-1) * (1 + ca) + sa
    x = x + ga * _A_ref(h, A_c_kv, A_w_q, A_w_uk, A_w_uv, A_w_o)
    h = _layernorm(x, axis=-1) * (1 + cb) + sb
    x = x + gb * _B_ref(h, B_w1, B_b1, B_w2, B_b2)
    return x
```

```python
import re

TRANS = ("v_exp_f32", "v_log_f32", "v_rcp_f32", "v_rsq_f32", "v_sqrt_f32", "v_sin_f32", "v_cos_f32",
         "v_rcp_iflag_f32")

_reg_re = re.compile(r"^(-|\|)?(abs\()?([vas])(\d+|\[(\d+):(\d+)\])\)?\|?$")

def regs_of(op):
    op = op.strip()
    if op in ("vcc", "vcc_lo", "vcc_hi"): return {("vcc", 0)}
    if op in ("exec", "exec_lo", "exec_hi"): return {("exec", 0)}
    if op == "m0": return {("m0", 0)}
    m = _reg_re.match(op)
    if not m: return set()
    f = m.group(3)
    if m.group(5) is not None:
        return {(f, i) for i in range(int(m.group(5)), int(m.group(6)) + 1)}
    return {(f, int(m.group(4)))}

class Ins:
    __slots__ = ("text", "mn", "ops", "mods", "dst", "src", "cls", "passes", "srcC", "srcAB", "data", "dpp")
    def __init__(self, text):
        self.text = text
        t = text.split(";")[0].strip()
        parts = t.split(None, 1)
        self.mn = parts[0]
        rest = parts[1] if len(parts) > 1 else ""
        ops = []; cur = ""; depth = 0
        for ch in rest:
            if ch in "[(": depth += 1
            if ch in "])": depth -= 1
            if ch == "," and depth == 0:
                ops.append(cur.strip()); cur = ""
            else: cur += ch
        if cur.strip(): ops.append(cur.strip())
        mods = ""
        if ops:
            sp = ops[-1].split(None, 1)
            if len(sp) > 1:
                ops[-1] = sp[0]; mods = sp[1]
        self.ops = ops; self.mods = mods
        mn = self.mn
        self.dst = set(); self.src = set(); self.passes = 0; self.srcC = set(); self.srcAB = set(); self.data = set()
        self.dpp = any(k in mods for k in ("row_", "quad_perm", "wave_", "bank_mask", "row_mask"))
        R = [regs_of(o) for o in ops]
        if mn.startswith("v_mfma"):
            self.cls = "mfma"
            self.passes = 8 if "32x32x16" in mn else (4 if "16x16x32" in mn else 16)
            self.dst = R[0]; self.srcAB = R[1] | R[2]; self.srcC = R[3]; self.src = self.srcAB | self.srcC
        elif mn.startswith("v_"):
            self.cls = "trans" if mn.replace("_e32", "").replace("_e64", "") in TRANS else "valu"
            if mn.startswith("v_cmp"):
                self.dst = set(R[0]);
                if mn.startswith("v_cmpx"): self.dst |= {("exec", 0)}
                for r in R[1:]: self.src |= r
            elif mn.startswith("v_permlane") and "swap" in mn:
                self.dst = R[0] | R[1]; self.src = R[0] | R[1]
            elif "_co_" in mn:
                self.dst = R[0] | R[1]
                for r in R[2:]: self.src |= r
            else:
                self.dst = set(R[0]) if R else set()
                for r in R[1:]: self.src |= r
                if mn.startswith(("v_fmac", "v_mac", "v_dot2c", "v_pk_fmac", "v_writelane")) or self.dpp:
                    self.src |= R[0]
                if mn.startswith("v_cndmask") and len(ops) == 3: self.src |= {("vcc", 0)}
        elif mn.startswith("ds_"):
            self.cls = "ds"
            if mn.startswith(("ds_read", "ds_bpermute", "ds_permute", "ds_swizzle")):
                self.dst = R[0]
                for r in R[1:]: self.src |= r
            else:
                for r in R: self.src |= r
        elif mn.startswith(("buffer_", "global_")):
            self.cls = "vmem"
            lds = "lds" in mods.split() or "_lds_" in mn
            if "load" in mn and not lds:
                self.dst = R[0]
                for r in R[1:]: self.src |= r
            elif "atomic" in mn:
                for r in R: self.src |= r
                if "sc0" in mods.split(): self.dst = R[0]
            else:
                for r in R: self.src |= r
                if lds: self.src |= {("m0", 0)}
                if "store" in mn and ("x4" in mn or "x3" in mn):
                    self.data = R[0] if mn.startswith("buffer_") else R[1]
        elif mn.startswith("s_"):
            self.cls = "salu"
            if mn.startswith(("s_cmp", "s_cbranch", "s_branch", "s_waitcnt", "s_barrier", "s_nop", "s_endpgm", "s_setprio", "s_sleep", "s_bitcmp")):
                for r in R: self.src |= r
            else:
                self.dst = set(R[0]) if R else set()
                for r in R[1:]: self.src |= r
                if "saveexec" in mn: self.dst |= {("exec", 0)}
        else:
            raise ValueError("unknown instruction: " + text)
    def states(self):
        if self.mn == "s_nop": return int(self.ops[0], 0) + 1
        return 1

def need(p, c):
    n = 0
    isv = lambda x: x.cls in ("valu", "trans")
    vreg = lambda S: {r for r in S if r[0] in ("v", "a")}
    sreg = lambda S: {r for r in S if r[0] in ("s", "vcc")}
    if isv(p):
        pv = vreg(p.dst); ps = sreg(p.dst)
        if c.cls == "mfma" and pv & c.src: n = max(n, 2)
        if c.cls == "vmem" and ps & c.src: n = max(n, 5)
        if isv(c) and ps & c.src:
            n = max(n, 4 if c.mn.startswith(("v_readlane", "v_writelane")) else 2)
        if c.mn.startswith(("v_readfirstlane", "v_readlane")) and pv & c.src: n = max(n, 1)
        if p.cls == "trans" and c.cls == "valu" and pv & c.src: n = max(n, 1)
        if p.cls == "trans" and c.cls == "mfma" and pv & c.src: n = max(n, 2)
        if c.mn.startswith("v_permlane") and pv & c.src: n = max(n, 2)
        if c.dpp and pv & c.src: n = max(n, 2)
        if ("exec", 0) in p.dst:
            if c.cls == "mfma": n = max(n, 4)
            if c.dpp: n = max(n, 5)
            if c.mn.startswith(("v_readfirstlane", "v_readlane", "v_permlane")): n = max(n, 4)
        if c.cls == "salu" and ps & c.src: n = max(n, 1)
        if ("op_sel" in p.mods or "sdwa" in p.mn or "dst_sel" in p.mods) and isv(c) and pv & (c.src | c.dst): n = max(n, 1)
    if p.cls == "mfma":
        big = {8: 12, 4: 8, 16: 20}[p.passes]; mid = {8: 10, 4: 6, 16: 18}[p.passes]; war = {8: 7, 4: 3, 16: 15}[p.passes]
        if isv(c) and p.dst & (c.src | c.dst): n = max(n, big)
        if c.cls in ("vmem", "ds") and p.dst & (c.src | c.dst): n = max(n, big)
        if c.cls == "mfma":
            if p.dst & c.srcAB: n = max(n, big)
            if p.dst & c.srcC and not (p.dst == c.srcC and p.passes == c.passes): n = max(n, mid)
            if p.dst & c.dst and not (p.dst == c.srcC): n = max(n, mid)
        if isv(c) and p.srcC & c.dst: n = max(n, war)
        if c.cls in ("vmem", "ds") and p.srcC & c.dst: n = max(n, war)
    if p.cls == "vmem" and p.data:
        if isv(c) and p.data & c.dst: n = max(n, 2)
        elif p.data & c.dst: n = max(n, 1)
    if p.cls == "salu" and ("m0", 0) in p.dst and c.cls == "vmem" and ("m0", 0) in c.src: n = max(n, 1)
    return n

class Asm:
    def __init__(self):
        self.items = []
        self.nops = 0
    def __call__(self, text):
        for line in text.split("\n"):
            line = line.strip()
            if not line: continue
            if line.startswith(";") or line.endswith(":") or line.startswith("."):
                self.items.append(line)
            else:
                self.items.append(Ins(line))
    def label(self, l): self.items.append(l + ":")
    def finalize(self, window=24):
        out = []
        hist = []
        def required(c, hist):
            dist = 0; req = 0
            for p in reversed(hist):
                k = need(p, c)
                if k > dist: req = max(req, k - dist)
                dist += p.states()
                if dist > window: break
            return req
        for it in self.items:
            if isinstance(it, str):
                out.append(it); continue
            r = required(it, hist)
            while r > 0:
                k = min(r, 16)
                nop = Ins(f"s_nop {k-1}"); out.append(nop); hist.append(nop); self.nops += 1
                r -= k
            out.append(it); hist.append(it)
            if len(hist) > 64: hist = hist[-64:]
        labels = {x[:-1]: i for i, x in enumerate(out) if isinstance(x, str) and x.endswith(":")}
        for i, it in enumerate(out):
            if isinstance(it, str) or not it.mn.startswith(("s_cbranch", "s_branch")): continue
            tgt = it.ops[0]
            if tgt not in labels: continue
            h = [x for x in out[max(0, i - 64): i + 1] if not isinstance(x, str)]
            j = labels[tgt]; cnt = 0
            while j < len(out) and cnt < window:
                c = out[j]; j += 1
                if isinstance(c, str): continue
                r = required(c, h)
                if r > 0:
                    raise RuntimeError(f"hazard across branch '{it.text}' -> '{c.text}' needs {r} more states")
                h.append(c); cnt += c.states()
                if c.mn in ("s_branch", "s_endpgm"): break
        self.items = out
        return "\n".join((x if isinstance(x, str) else "  " + x.text) for x in out) + "\n"

def kd(name, vgpr, sgpr=96, accum=None):
    if accum is None: accum = (vgpr + 3) // 4 * 4
    return f""".p2align 6
.amdhsa_kernel {name}
  .amdhsa_next_free_vgpr {vgpr}
  .amdhsa_next_free_sgpr {sgpr}
  .amdhsa_accum_offset {accum}
  .amdhsa_group_segment_fixed_size 0
  .amdhsa_kernarg_size 128
  .amdhsa_user_sgpr_count 2
  .amdhsa_user_sgpr_kernarg_segment_ptr 1
  .amdhsa_system_sgpr_workgroup_id_x 1
.end_amdhsa_kernel
"""

def head(a, name):
    a(f".globl {name}\n.p2align 8\n.type {name},@function")
    a.label(name)

def interleave(main, fill, per):
    out = []; fi = 0
    for i, m in enumerate(main):
        out.append(m)
        k = per(i) if callable(per) else per
        for _ in range(k):
            if fi < len(fill): out.append(fill[fi]); fi += 1
    out.extend(fill[fi:])
    return out
```

```python
from asmlib import *
from gemm import srd, WS, OOB
import struct
def fb(x): return struct.unpack("<I", struct.pack("<f", x))[0]

def attn_kernel(name="attn_kernel"):
    a = Asm(); head(a, name)
    NWG = 256
    vLane, vKa, vVa, vDma, vLin, vL0, vL1, vThr, vMx, vT0, vT1, vT2, vNeg = 1, 2, 3, 4, 5, 6, 7, 8, 9, 10, 11, 12, 13
    vNM = 16; vS = [32, 48]; vO = 64; vQ = 128; vF = 160; vP = [192, 200]
    NV = 208
    SPARE = 128 * 1024
    T = 24.0
    rare_blocks = []
    a(f"s_cmp_ge_u32 s2, {NWG}")
    a(f"s_cbranch_scc1 L_end_{name}")
    srd(a, 4, "ws")
    a(f"v_lshrrev_b32 v{vT0}, 6, v0")
    a(f"v_and_b32 v{vLane}, 63, v0")
    a(f"v_readfirstlane_b32 s20, v{vT0}")
    a("s_and_b32 s38, s2, 7")
    a("s_lshr_b32 s39, s2, 3")
    a("s_lshr_b32 s23, s39, 2")
    a("s_and_b32 s39, s39, 3")
    a("s_lshl_b32 s38, s38, 2")
    a("s_add_u32 s33, s38, s39")
    a("s_lshl_b32 s24, s33, 19")
    a("s_and_b32 s21, s20, 3")
    a("s_lshr_b32 s22, s20, 2")
    a(f"v_lshlrev_b32 v{vLin}, 4, v{vLane}")
    a("s_lshl_b32 s38, s20, 12")
    a(f"v_add_u32 v{vDma}, s38, v{vLin}")
    a("s_mov_b32 s28, s38")
    a("s_add_u32 s29, s38, 0x10000")
    a("s_lshl_b32 s39, s22, 14")
    a(f"v_add_u32 v{vKa}, s39, v{vLin}")
    a(f"v_add_u32 v{vVa}, 0x18000, v{vKa}")
    a("s_lshl_b32 s25, s23, 15")
    a("s_add_u32 s25, s25, s24")
    a(f"s_add_u32 s25, s25, {WS['KF']}")
    a("s_mov_b32 s26, s23")
    a("s_sub_u32 s27, 15, s23")
    a("s_mov_b32 s31, s23")
    a("s_mov_b32 s32, 0")
    a(f"v_mov_b32 v{vNeg}, 0x{fb(-1e30):08x}")
    a(f"v_and_b32 v{vT0}, 31, v{vLane}")
    a(f"v_lshrrev_b32 v{vT1}, 5, v{vLane}")
    a(f"v_lshlrev_b32 v{vT1}, 2, v{vT1}")
    a(f"v_sub_u32 v{vT0}, v{vT0}, v{vT1}")
    a("s_lshl_b32 s38, s21, 5")
    a("s_lshl_b32 s39, s22, 6")
    a("s_sub_u32 s38, s38, s39")
    a(f"v_add_u32 v{vThr}, s38, v{vT0}")
    a("s_waitcnt lgkmcnt(0)")

    def dmaK():
        L = ["s_mov_b32 m0, s28"]
        for i in range(4): L.append(f"buffer_load_dwordx4 v{vDma}, s[4:7], s25 offen offset:{1024*i} lds")
        return L
    def dmaV():
        L = ["s_mov_b32 m0, s29"]
        for i in range(4): L.append(f"buffer_load_dwordx4 v{vDma}, s[4:7], s44 offen offset:{1024*i} lds")
        return L
    def advK():
        return [f"s_add_u32 s44, s25, {WS['VF'] - WS['KF']}",
                "s_sub_u32 s45, s26, 1",
                "s_cmp_eq_u32 s26, 0",
                "s_cselect_b32 s26, s27, s45",
                "s_cselect_b32 s27, 0x4000, s27",
                "s_lshl_b32 s25, s26, 15",
                "s_add_u32 s25, s25, s24",
                f"s_add_u32 s25, s25, {WS['KF']}",
                "s_xor_b32 s28, s28, 0x8000"]
    def loadQ():
        L = ["s_lshl_b32 s38, s31, 2", "s_add_u32 s38, s38, s21", "s_lshl_b32 s38, s38, 13",
             "s_add_u32 s38, s38, s24", f"s_add_u32 s38, s38, {WS['QF']}", "s_add_u32 s39, s38, 4096"]
        for k in range(8):
            L.append(f"buffer_load_dwordx4 v[{vQ+4*k}:{vQ+4*k+3}], v{vLin}, s[4:7], s{38 + k//4} offen offset:{1024*(k%4)}")
        return L
    def period_dma():
        return dmaV() + ["s_xor_b32 s29, s29, 0x8000"] + dmaK() + advK()

    for t in dmaK() + advK() + loadQ(): a(t)
    a("s_waitcnt vmcnt(0)")
    a("s_barrier")
    for t in period_dma(): a(t)

    def rd(kind, u, k, buf):
        d = vF + 4 * (buf % 8)
        base = vKa if kind == "K" else vVa
        return f"ds_read_b128 v[{d}:{d+3}], v{base} offset:{u*8192 + k*1024}"
    def qk(u, sp, k, buf):
        S = vS[sp]; d = vF + 4 * (buf % 8)
        C = vNM if k == 0 else S
        return f"v_mfma_f32_32x32x16_bf16 v[{S}:{S+15}], v[{d}:{d+3}], v[{vQ+4*k}:{vQ+4*k+3}], v[{C}:{C+15}]"
    def pv(pp, k, buf):
        half, db = k // 4, k % 4
        d = vF + 4 * (buf % 8); O = vO + 16 * db; P = vP[pp] + 4 * half
        return f"v_mfma_f32_32x32x16_bf16 v[{O}:{O+15}], v[{d}:{d+3}], v[{P}:{P+3}], v[{O}:{O+15}]"
    def softmax(sp, pp):
        S = vS[sp]; P = vP[pp]
        L = []
        e = lambda r: f"v_exp_f32 v{S+r}, v{S+r}"
        ad = lambda r: f"v_add_f32 v{vL0 + (r&1)}, v{vL0 + (r&1)}, v{S+r}"
        cv = lambda k: f"v_cvt_pk_bf16_f32 v{P+k}, v{S+2*k}, v{S+2*k+1}"
        L += [e(0), e(1)]
        for r in range(2, 16):
            L.append(e(r)); L.append(ad(r - 2))
            if r % 2 == 1: L.append(cv((r - 3) // 2))
        L += [ad(14), ad(15), cv(7)]
        return L
    def maxtree(sp):
        S = vS[sp]
        L = [f"v_max3_f32 v{vMx}, v{S}, v{S+1}, v{S+2}", f"v_max3_f32 v{vT0}, v{S+3}, v{S+4}, v{S+5}"]
        L += [f"v_max3_f32 v{vMx}, v{vMx}, v{S+6}, v{S+7}", f"v_max3_f32 v{vT0}, v{vT0}, v{S+8}, v{S+9}"]
        L += [f"v_max3_f32 v{vMx}, v{vMx}, v{S+10}, v{S+11}", f"v_max3_f32 v{vT0}, v{vT0}, v{S+12}, v{S+13}"]
        L += [f"v_max3_f32 v{vMx}, v{vMx}, v{S+14}, v{S+15}", f"v_max_f32 v{vMx}, v{vMx}, v{vT0}"]
        return L
    site = [0]
    def check(sp, pp):
        n = site[0]; site[0] += 1
        rare_blocks.append((n, sp, pp))
        return [f"v_cmp_lt_f32 vcc, 0x{fb(T):08x}, v{vMx}", "s_or_b64 s[36:37], vcc, s[34:35]",
                f"s_cbranch_scc1 L_rare{n}_{name}", f"L_back{n}_{name}:"]
    def mask(sp, u):
        S = vS[sp]; L = []
        pr = [48, 50, 52, 54]
        for r in range(18):
            if r < 16:
                off = (r & 3) + 8 * (r >> 2) + 32 * u
                sp_ = pr[r % 4]
                L.append(f"v_cmp_gt_i32 s[{sp_}:{sp_+1}], {off}, v{vThr}")
            if r >= 2:
                q = r - 2; sq = pr[q % 4]
                L.append(f"v_cndmask_b32 v{S+q}, v{S+q}, v{vNeg}, s[{sq}:{sq+1}]")
        return L
    def toggles():
        return [f"v_xor_b32 v{vKa}, 0x8000, v{vKa}", f"v_xor_b32 v{vVa}, 0x8000, v{vVa}"]

    def emit_stream(mf, reads_after, fills):
        for k, m in enumerate(mf):
            for t in m[0]: a(t)
            a(m[1])
            for t in reads_after.get(k, []): a(t)
            for t in fills.get(k, []): a(t)

    def spread(L, lo, hi):
        n = hi - lo + 1; d = {}
        for i, t in enumerate(L):
            d.setdefault(lo + i * n // len(L), []).append(t)
        return d
    def merge_f(*ds):
        o = {}
        for d in ds:
            for k, v in d.items(): o.setdefault(k, []).extend(v)
        return o

    def sync_and_tail(rest, fills, nxt_label_full, nxt_label_drain, tag):
        a("s_waitcnt vmcnt(0) lgkmcnt(0)")
        a("s_barrier")
        for t in toggles(): a(t)
        a("s_sub_u32 s30, s30, 1")
        a("s_cmp_eq_u32 s30, 0")
        a(f"s_cbranch_scc1 L_tailV_{tag}_{name}")
        for kind in ("K", "V"):
            if kind == "V": a.label(f"L_tailV_{tag}_{name}")
            nr = [rd(kind, 0, k, k) for k in range(6)]
            fl = fills(kind)
            for t in nr[:3]: a(t)
            for idx, m in enumerate(rest):
                a(m)
                if idx < 3: a(nr[3 + idx])
                for t in fl.get(idx, []): a(t)
            if kind == "K": a(f"s_branch {nxt_label_full}")
            else:
                if nxt_label_drain: a(f"s_branch {nxt_label_drain}")

    a.label(f"L_qb_{name}")
    for r in range(64): a(f"v_mov_b32 v{vO+r}, 0")
    for r in range(16): a(f"v_mov_b32 v{vNM+r}, 0")
    a(f"v_mov_b32 v{vL0}, 0"); a(f"v_mov_b32 v{vL1}, 0")
    a("s_mov_b64 s[34:35], -1")
    a("s_add_u32 s30, s31, 1")
    for k in range(6): a(rd("K", 0, k, k))
    a("s_waitcnt vmcnt(12)")
    for k in range(8):
        if k % 2 == 0: a("s_waitcnt lgkmcnt(4)")
        a(qk(0, 0, k, k))
        kk = k + 6
        a(rd("K", kk // 8, kk % 8, kk))
    for t in mask(0, 0) + maxtree(0) + check(0, None): a(t)
    sm = spread(softmax(0, 0), 0, 7)
    for k in range(8, 12):
        if k % 2 == 0: a("s_waitcnt lgkmcnt(4)" if k < 10 else "s_waitcnt lgkmcnt(2)")
        a(qk(1, 1, k - 8, k))
        kk = k + 6
        if kk < 16: a(rd("K", 1, kk - 8, kk))
        for t in sm.get(k - 8, []): a(t)
    def p0_fills(kind):
        d = {i: list(sm.get(4 + i, [])) for i in range(4)}
        d[3] = d[3] + mask(1, 1) + maxtree(1) + check(1, 0)
        return d
    sync_and_tail([qk(1, 1, k - 8, k) for k in range(12, 16)], p0_fills, f"L_full_{name}", f"L_drain_{name}", "p0")

    a(".p2align 3")
    a.label(f"L_full_{name}")
    mf = [qk(0, 0, k, k) for k in range(8)] + [pv(0, k, 8 + k) for k in range(8)] + \
         [qk(1, 1, k, 16 + k) for k in range(8)] + [pv(1, k, 24 + k) for k in range(8)]
    src = [("K", 0, k) for k in range(8)] + [("V", 0, k) for k in range(8)] + [("K", 1, k) for k in range(8)] + [("V", 1, k) for k in range(8)]
    dm = period_dma()
    fA = merge_f(spread(softmax(1, 1), 0, 12), spread(maxtree(0), 11, 15), spread(dm, 0, 15))
    fA[15] = fA[15] + check(0, 1)
    fB = merge_f(spread(softmax(0, 0), 16, 28), spread(maxtree(1), 27, 31))
    for k in range(28):
        if k % 2 == 0:
            outstanding_ok = 4 if k + 5 < 32 else 0
            a(f"s_waitcnt lgkmcnt({4 if k <= 26 else 0})")
        a(mf[k])
        kk = k + 6
        if kk < 32: a(rd(src[kk][0], src[kk][1], src[kk][2], kk))
        for t in (fA.get(k, []) if k < 16 else fB.get(k, [])): a(t)
    def full_fills(kind):
        d = {i: list(fB.get(28 + i, [])) for i in range(4)}
        d[3] = d[3] + check(1, 0)
        return d
    sync_and_tail(mf[28:], full_fills, f"L_full_{name}", None, "full")

    a.label(f"L_drain_{name}")
    a("s_sub_u32 s46, 15, s23")
    a("s_mov_b32 s47, s31")
    a("s_cmp_eq_u32 s32, 0")
    a("s_cselect_b32 s31, s46, 0x4000")
    mf = [pv(0, k, k) for k in range(8)] + [pv(1, k, 8 + k) for k in range(8)]
    src = [("V", 0, k) for k in range(8)] + [("V", 1, k) for k in range(8)]
    fD = merge_f(spread(softmax(1, 1), 0, 6), spread(loadQ() + period_dma(), 0, 15))
    for k in range(16):
        if k % 2 == 0: a(f"s_waitcnt lgkmcnt({min(4, max(0, 16 - 2 - k))})")
        a(mf[k])
        kk = k + 6
        if kk < 16: a(rd(src[kk][0], src[kk][1], src[kk][2], kk))
        for t in fD.get(k, []): a(t)
    a(f"v_add_f32 v{vL0}, v{vL0}, v{vL1}")
    a(f"v_mov_b32 v{vT0}, v{vL0}")
    a(f"v_permlane32_swap_b32 v{vT0}, v{vL0}")
    a(f"v_add_f32 v{vT1}, v{vT0}, v{vL0}")
    a("s_cmp_lg_u64 s[34:35], 0")
    a(f"s_cselect_b32 s38, 0x{fb(-1e30):08x}, 0")
    a(f"v_sub_f32 v{vT0}, s38, v{vNM}")
    ML = SPARE + 0x8000 - 0x800
    a(f"v_and_b32 v{vT2}, 31, v{vLane}")
    a(f"v_lshlrev_b32 v{vT2}, 3, v{vT2}")
    a("s_lshl_b32 s38, s20, 8")
    a(f"s_add_u32 s38, s38, {ML}")
    a(f"v_add_u32 v{vMx}, s38, v{vT2}")
    a(f"ds_write_b64 v{vMx}, v[{vT0}:{vT1}]")
    a(f"v_xor_b32 v{vMx}, 0x400, v{vMx}")
    a("s_waitcnt lgkmcnt(0)")
    a("s_barrier")
    a(f"ds_read_b64 v[14:15], v{vMx}")
    a("s_waitcnt lgkmcnt(0)")
    a(f"v_max_f32 v{vT2}, v{vT0}, v14")
    a(f"v_sub_f32 v{vT0}, v{vT0}, v{vT2}")
    a(f"v_sub_f32 v14, v14, v{vT2}")
    a(f"v_exp_f32 v{vT0}, v{vT0}")
    a("v_exp_f32 v14, v14")
    a(f"v_mul_f32 v{vT1}, v{vT1}, v{vT0}")
    a(f"v_fmac_f32 v{vT1}, v14, v15")
    a(f"v_rcp_f32 v{vT1}, v{vT1}")
    a(f"v_mul_f32 v{vT0}, v{vT0}, v{vT1}")
    a(f"v_and_b32 v{vT2}, 0x18000, v{vVa}")
    a(f"v_add_u32 v{vT2}, v{vT2}, v{vDma}")
    a("s_cmp_eq_u32 s22, 0")
    a(f"s_cbranch_scc0 L_mg1_{name}")
    for g in range(2):
        if g == 1: a.label(f"L_mg1_{name}")
        keep = vO + 32 * g; send = vO + 32 * (1 - g)
        for r in range(32): a(f"v_mul_f32 v{send+r}, v{send+r}, v{vT0}")
        for q in range(4):
            for p in range(4):
                a(f"v_cvt_pk_bf16_f32 v{vF+4*q+p}, v{send+8*q+2*p}, v{send+8*q+2*p+1}")
            a(f"ds_write_b128 v{vT2}, v[{vF+4*q}:{vF+4*q+3}] offset:{1024*q}")
        if g == 0:
            for r in range(32): a(f"v_mov_b32 v{vS[0]+r}, v{keep+r}")
            a(f"s_branch L_mg2_{name}")
        else:
            for r in range(32): a(f"v_mov_b32 v{vS[0]+r}, v{keep+r}")
    a.label(f"L_mg2_{name}")
    a(f"v_xor_b32 v{vT2}, 0x4000, v{vT2}")
    a("s_waitcnt lgkmcnt(0)")
    a("s_barrier")
    for q in range(4): a(f"ds_read_b128 v[{vF+16+4*q}:{vF+16+4*q+3}], v{vT2} offset:{1024*q}")
    a("s_lshl_b32 s38, s47, 2")
    a("s_add_u32 s38, s38, s21")
    a("s_lshl_b32 s38, s38, 18")
    a("s_lshl_b32 s39, s33, 13")
    a("s_add_u32 s38, s38, s39")
    a("s_lshl_b32 s39, s22, 12")
    a("s_add_u32 s38, s38, s39")
    a(f"s_add_u32 s38, s38, {WS['CTX']}")
    K0 = vS[0]
    for q in range(4):
        a(f"s_waitcnt lgkmcnt({3-q})")
        for p in range(4):
            src_ = vF + 16 + 4 * q + p
            a(f"v_lshlrev_b32 v14, 16, v{src_}")
            a(f"v_and_b32 v15, 0xffff0000, v{src_}")
            a(f"v_fmac_f32 v14, v{K0+8*q+2*p}, v{vT0}")
            a(f"v_fmac_f32 v15, v{K0+8*q+2*p+1}, v{vT0}")
            a(f"v_cvt_pk_bf16_f32 v{vF+4*q+p}, v14, v15")
        a(f"buffer_store_dwordx4 v[{vF+4*q}:{vF+4*q+3}], v{vLin}, s[4:7], s38 offen offset:{1024*q}")
    a("s_add_u32 s32, s32, 1")
    a("s_cmp_eq_u32 s32, 1")
    a(f"s_cbranch_scc1 L_qb_{name}")
    a("s_endpgm")
    for (n, sp, pp) in rare_blocks:
        S = vS[sp]
        a.label(f"L_rare{n}_{name}")
        a(f"v_mov_b32 v{vT0}, v{vMx}")
        a(f"v_permlane32_swap_b32 v{vT0}, v{vMx}")
        a(f"v_max_f32 v{vMx}, v{vMx}, v{vT0}")
        a("s_cmp_lg_u64 s[34:35], 0")
        a(f"s_cbranch_scc0 L_rs{n}_{name}")
        a(f"v_cmp_lt_f32 vcc, 0x{fb(-1e29):08x}, v{vMx}")
        a(f"s_cbranch_vccz L_back{n}_{name}")
        a("s_mov_b64 s[34:35], 0")
        a(f"s_branch L_ra{n}_{name}")
        a.label(f"L_rs{n}_{name}")
        a(f"v_max_f32 v{vMx}, 0, v{vMx}")
        a(f"v_sub_f32 v{vT0}, 0, v{vMx}")
        a(f"v_exp_f32 v{vT0}, v{vT0}")
        a("s_nop 15")
        for r in range(64): a(f"v_mul_f32 v{vO+r}, v{vO+r}, v{vT0}")
        a(f"v_mul_f32 v{vL0}, v{vL0}, v{vT0}")
        a(f"v_mul_f32 v{vL1}, v{vL1}, v{vT0}")
        if pp is not None:
            for k in range(8):
                P = vP[pp] + k
                a(f"v_lshlrev_b32 v{vT1}, 16, v{P}")
                a(f"v_and_b32 v{vT2}, 0xffff0000, v{P}")
                a(f"v_mul_f32 v{vT1}, v{vT1}, v{vT0}")
                a(f"v_mul_f32 v{vT2}, v{vT2}, v{vT0}")
                a(f"v_cvt_pk_bf16_f32 v{P}, v{vT1}, v{vT2}")
        a.label(f"L_ra{n}_{name}")
        for r in range(16): a(f"v_sub_f32 v{S+r}, v{S+r}, v{vMx}")
        for r in range(16): a(f"v_sub_f32 v{vNM+r}, v{vNM+r}, v{vMx}")
        a("s_nop 1")
        a(f"s_branch L_back{n}_{name}")
    a.label(f"L_end_{name}")
    a("s_endpgm")
    return a.finalize(), kd(name, NV), f"; @launch kernel={name} grid=({NWG},1,1) block=(512,1,1) lds={160*1024}"
```

```python
from asmlib import *

ARG = dict(x=0, ckv=8, wq=16, wuk=24, wuv=32, wo=40, bx=48, w1=56, b1=64, w2=72, b2=80, c=88, wmod=96, out=104, dbg=112, ws=120)
SZ = dict(x=2048*576*2, ckv=2048*512*2, wq=576*4096*2, wuk=512*4096*2, wuv=512*4096*2, wo=4096*576*2,
          w1=2048*4608*2, b1=4608*2, w2=4608*2048*2, b2=2048*2, c=576*2, wmod=576*3456*2, out=2048*576*2, dbg=256, ws=0x10000000)
WS = dict(MOD=0, H1=0x10000, X1=0x250000, H2=0x490000, U=0x6D0000, QF=0x1000000, KF=0x2000000, VF=0x3000000,
          CTX=0x4000000, OP=0x5000000, YP=0x7000000)
OOB = 0x7F000000

def srd(a, s, name):
    a(f"s_load_dwordx2 s[{s}:{s+1}], s[0:1], {ARG[name]}")
    a(f"s_mov_b32 s{s+2}, 0x{SZ[name]:x}")
    a(f"s_mov_b32 s{s+3}, 0x00020000")

def divc(a, dst, src, c, tmp_s):
    if c & (c - 1) == 0:
        a(f"v_lshrrev_b32 v{dst}, {c.bit_length()-1}, v{src}")
    else:
        magic = (1 << 16) // c + 1
        assert all((x * magic) >> 16 == x // c for x in range(1024)), c
        a(f"s_mov_b32 s{tmp_s}, {magic}")
        a(f"v_mul_u32_u24 v{dst}, s{tmp_s}, v{src}")
        a(f"v_lshrrev_b32 v{dst}, 16, v{dst}")

class Operand:
    def __init__(self, mode, T, buf, ld=None, blkstride=None, korder="nat"):
        self.mode = mode; self.T = T; self.buf = buf; self.ld = ld; self.blkstride = blkstride; self.korder = korder
        self.nblk = T // 32
        self.bytes = T * 128
        self.chunks = self.bytes // 1024
        self.adv = {"R": 128, "T": 64 * (ld or 0), "F": 4096}[mode]

def gemm_kernel(name, X, W, wx, ww, NS, R, x_is_row, decode, epilogue, nwg, extra_srd=None, out_buf="ws"):
    a = Asm()
    nw = wx * ww
    fx = X.nblk // wx; fw = W.nblk // ww
    assert fx * wx == X.nblk and fw * ww == W.nblk
    assert X.chunks % nw == 0 and W.chunks % nw == 0, (X.chunks, W.chunks, nw)
    ndx = X.chunks // nw; ndw = W.chunks // nw; nd = ndx + ndw
    slot = X.bytes + W.bytes
    lds = slot * R
    assert lds <= 160 * 1024
    v = 1
    vLane = v; v += 1
    vT0 = v; vT1 = v + 1; vT2 = v + 2; vT3 = v + 3; v += 4
    vDX = v; v += ndx
    vDW = v; v += ndw
    nrx = 4 if X.mode == "R" else 1
    vRX = v; v += nrx
    vRW = v; v += 1
    vCX = v; v += nrx
    vCW = v; v += 1
    v = (v + 3) // 4 * 4
    vFX = v; v += 2 * fx * 4
    vFW = v; v += 2 * fw * 4
    vAcc = v; v += fx * fw * 16
    vEnd = v
    head(a, name)
    a(f"s_cmp_ge_u32 s2, {nwg}")
    a(f"s_cbranch_scc1 L_end_{name}")
    srd(a, 4, X.buf); srd(a, 8, W.buf); srd(a, 12, out_buf)
    if extra_srd: srd(a, 16, extra_srd)
    a(f"v_lshrrev_b32 v{vT0}, 6, v0")
    a(f"v_and_b32 v{vLane}, 63, v0")
    a(f"v_readfirstlane_b32 s20, v{vT0}")
    decode(a)
    a(f"s_and_b32 s28, s20, {wx-1}" if wx & (wx-1) == 0 else "")
    assert wx & (wx - 1) == 0
    a(f"s_lshr_b32 s29, s20, {wx.bit_length()-1}")
    def dma_offsets(op, vD, nI):
        for i in range(nI):
            if op.mode == "R":
                a(f"s_lshl_b32 s30, s20, 3")
                a(f"v_lshrrev_b32 v{vT0}, 3, v{vLane}")
                a(f"v_add3_u32 v{vT0}, v{vT0}, s30, {0}" if False else f"v_add_u32 v{vT0}, s30, v{vT0}")
                if i: a(f"v_add_u32 v{vT0}, {8*nw*i}, v{vT0}")
                a(f"v_bfe_u32 v{vT1}, v{vT0}, 1, 3")
                a(f"v_and_b32 v{vT2}, 7, v{vLane}")
                a(f"v_xor_b32 v{vT1}, v{vT1}, v{vT2}")
                a(f"v_lshlrev_b32 v{vT1}, 4, v{vT1}")
                a(f"s_mov_b32 s30, {op.ld}")
                a(f"v_mad_u32_u24 v{vD+i}, v{vT0}, s30, v{vT1}")
            elif op.mode == "T":
                a(f"s_lshl_b32 s30, s20, 2")
                a(f"v_lshrrev_b32 v{vT0}, 4, v{vLane}")
                a(f"v_add_u32 v{vT0}, s30, v{vT0}")
                if i: a(f"v_add_u32 v{vT0}, {4*nw*i}, v{vT0}")
                divc(a, vT1, vT0, op.nblk, 30)
                a(f"v_mul_u32_u24 v{vT2}, {op.nblk}, v{vT1}")
                a(f"v_sub_u32 v{vT2}, v{vT0}, v{vT2}")
                a(f"v_bfe_u32 v{vT0}, v{vLane}, 2, 2")
                a(f"v_lshl_add_u32 v{vT1}, v{vT1}, 2, v{vT0}")
                a(f"v_and_b32 v{vT0}, 3, v{vLane}")
                a(f"v_lshlrev_b32 v{vT0}, 4, v{vT0}")
                a(f"v_lshl_add_u32 v{vT0}, v{vT2}, 6, v{vT0}")
                a(f"s_mov_b32 s30, {op.ld}")
                a(f"v_mad_u32_u24 v{vD+i}, v{vT1}, s30, v{vT0}")
            else:
                a(f"s_add_u32 s30, s20, {nw*i}")
                a(f"s_lshr_b32 s31, s30, 2")
                a(f"s_mul_i32 s31, s31, {op.blkstride}")
                a(f"s_and_b32 s30, s30, 3")
                a(f"s_lshl_b32 s30, s30, 10")
                a(f"s_add_u32 s30, s30, s31")
                a(f"v_lshlrev_b32 v{vT0}, 4, v{vLane}")
                a(f"v_add_u32 v{vD+i}, s30, v{vT0}")
    dma_offsets(X, vDX, ndx); dma_offsets(W, vDW, ndw)
    a(f"s_lshl_b32 s23, s20, 10")
    a("s_waitcnt lgkmcnt(0)")
    def dma_list():
        L = []
        for i in range(ndx):
            L.append([f"s_add_u32 m0, s23, {i*nw*1024}", f"buffer_load_dwordx4 v{vDX+i}, s[4:7], s21 offen lds"])
        for i in range(ndw):
            L.append([f"s_add_u32 m0, s23, {X.bytes + i*nw*1024}", f"buffer_load_dwordx4 v{vDW+i}, s[8:11], s22 offen lds"])
        return L
    def dma_advance():
        return [f"s_add_u32 s21, s21, {X.adv}", f"s_add_u32 s22, s22, {W.adv}"]
    for r in range(R):
        assert r < NS
        for p in dma_list():
            a(p[0]); a(p[1])
        for t in dma_advance(): a(t)
        if r < R - 1: a(f"s_add_u32 s23, s23, {slot}")
    a(f"s_lshl_b32 s23, s20, 10")
    def read_base(op, vR, swv, f, region):
        if op.mode == "R":
            a(f"s_mul_i32 s30, s{swv}, {f*4096}")
            a(f"v_and_b32 v{vT0}, 31, v{vLane}")
            a(f"v_bfe_u32 v{vT1}, v{vLane}, 1, 3")
            a(f"v_lshrrev_b32 v{vT2}, 5, v{vLane}")
            a(f"v_lshlrev_b32 v{vT0}, 7, v{vT0}")
            a(f"v_add_u32 v{vT0}, s30, v{vT0}")
            for ks in range(4):
                a(f"v_add_u32 v{vT3}, {2*ks}, v{vT2}")
                a(f"v_xor_b32 v{vT3}, v{vT3}, v{vT1}")
                a(f"v_lshl_add_u32 v{vR+ks}, v{vT3}, 4, v{vT0}")
                if region: a(f"v_add_u32 v{vR+ks}, {region}, v{vR+ks}")
        elif op.mode == "T":
            mul = (2 if op.korder == "nat" else 1) * op.nblk * 256
            a(f"s_mul_i32 s30, s{swv}, {f*256}")
            if region: a(f"s_add_u32 s30, s30, {region}")
            a(f"v_lshrrev_b32 v{vT0}, 5, v{vLane}")
            a(f"v_mul_u32_u24 v{vT0}, {mul}, v{vT0}")
            a(f"v_bfe_u32 v{vT1}, v{vLane}, 2, 2")
            a(f"v_lshl_add_u32 v{vT0}, v{vT1}, 6, v{vT0}")
            a(f"v_bfe_u32 v{vT1}, v{vLane}, 4, 1")
            a(f"v_lshl_add_u32 v{vT0}, v{vT1}, 5, v{vT0}")
            a(f"v_and_b32 v{vT1}, 3, v{vLane}")
            a(f"v_lshl_add_u32 v{vT0}, v{vT1}, 3, v{vT0}")
            a(f"v_add_u32 v{vR}, s30, v{vT0}")
        else:
            a(f"s_mul_i32 s30, s{swv}, {f*4096}")
            if region: a(f"s_add_u32 s30, s30, {region}")
            a(f"v_lshlrev_b32 v{vT0}, 4, v{vLane}")
            a(f"v_add_u32 v{vR}, s30, v{vT0}")
    read_base(X, vRX, 28, fx, 0); read_base(W, vRW, 29, fw, X.bytes)
    def reads(op, vC, vF, f, ks, par):
        L = []
        for j in range(f):
            d = vF + (par * f + j) * 4
            if op.mode == "R":
                L.append(f"ds_read_b128 v[{d}:{d+3}], v{vC+ks} offset:{j*4096}")
            elif op.mode == "F":
                L.append(f"ds_read_b128 v[{d}:{d+3}], v{vC} offset:{(j*4+ks)*1024}")
            else:
                st = 1 if op.korder == "nat" else 2
                for q in range(2):
                    off = (4 * ks + q * st) * op.nblk * 256 + j * 256
                    L.append(f"ds_read_b64_tr_b16 v[{d+2*q}:{d+2*q+1}], v{vC} offset:{off}")
        return L
    def all_reads(ks, par):
        rx = reads(X, vCX, vFX, fx, ks, par); rw = reads(W, vCW, vFW, fw, ks, par)
        out = []
        nx = len(rx) // fx; nwr = len(rw) // fw
        out += rx[:nx] + rw[:nwr]
        rest_x = rx[nx:]; rest_w = rw[nwr:]
        out += rest_w + rest_x
        return out
    def set_cur():
        L = []
        for k in range(nrx): L.append(f"v_add_u32 v{vCX+k}, s24, v{vRX+k}")
        L.append(f"v_add_u32 v{vCW}, s24, v{vRW}")
        return L
    def mfmas(par):
        L = []
        for ix in range(fx):
            for iw in range(fw):
                c = vAcc + (ix * fw + iw) * 16
                xr = vFX + (par * fx + ix) * 4; wr = vFW + (par * fw + iw) * 4
                A, B = (xr, wr) if x_is_row else (wr, xr)
                L.append(f"v_mfma_f32_32x32x16_bf16 v[{c}:{c+15}], v[{A}:{A+3}], v[{B}:{B+3}], v[{c}:{c+15}]")
        return L
    for r in range(vAcc, vEnd): a(f"v_mov_b32 v{r}, 0")
    a("s_mov_b32 s24, 0")
    for t in set_cur(): a(t)
    a(f"s_mov_b32 s25, {NS}")
    a(f"s_waitcnt vmcnt({(R-1)*nd})")
    a("s_barrier")
    for t in all_reads(0, 0): a(t)
    a(".p2align 3")
    a.label(f"L_loop_{name}")
    nm = fx * fw
    for ks in range(4):
        par = ks & 1
        M = mfmas(par)
        a("s_waitcnt lgkmcnt(0)")
        if ks < 3:
            F = all_reads(ks + 1, par ^ 1)
            per = -(-len(F) // max(1, nm - 1)) if nm > 1 else len(F)
            for t in interleave(M, F, per): a(t)
        else:
            pre = [f"s_add_u32 s24, s24, {slot}", f"s_cmp_eq_u32 s24, {lds}", "s_cselect_b32 s24, 0, s24"] + set_cur()
            a(M[0])
            for t in pre: a(t)
            a(f"s_cmp_le_u32 s25, {R}")
            a(f"s_cselect_b32 s21, {OOB}, s21")
            a(f"s_cselect_b32 s22, {OOB}, s22")
            if nm > 2: a(M[1])
            a(f"s_waitcnt vmcnt({(R-2)*nd})")
            a("s_barrier")
            rest = M[2:] if nm > 2 else M[1:]
            F = all_reads(0, par ^ 1)
            D = []
            for p in dma_list(): D += p
            fill = F + D + dma_advance() + [f"s_add_u32 s23, s23, {slot}", f"s_sub_u32 s26, s23, {lds}",
                     f"s_cmp_ge_u32 s23, {lds}", "s_cselect_b32 s23, s26, s23"]
            if rest:
                per = -(-len(fill) // len(rest))
                seq = []
                fi = 0
                for m in rest:
                    seq += fill[fi:fi+per]; fi += per
                    seq.append(m)
                seq += fill[fi:]
            else: seq = fill
            for t in seq: a(t)
    a("s_sub_u32 s25, s25, 1")
    a("s_cmp_lg_u32 s25, 0")
    a(f"s_cbranch_scc1 L_loop_{name}")
    a("s_waitcnt lgkmcnt(0)")
    ctx = dict(vAcc=vAcc, fx=fx, fw=fw, vLane=vLane, vT=vT0, vFree=vFX, vFreeEnd=vAcc, swx=28, sww=29)
    epilogue(a, ctx)
    a.label(f"L_end_{name}")
    a("s_endpgm")
    text = a.finalize()
    return text, kd(name, vEnd), f"; @launch kernel={name} grid=({nwg},1,1) block=({nw*64},1,1) lds={lds}"

def ep_frag(SX, SW, SH, scale=None, gelu_bias=False):
    def f(a, c):
        vAcc, fx, fw, vLane, vT, vF = c["vAcc"], c["fx"], c["fw"], c["vLane"], c["vT"], c["vFree"]
        a(f"s_mul_i32 s30, s{c['swx']}, {fx*SX}")
        a(f"s_mul_i32 s31, s{c['sww']}, {fw*SW}")
        a("s_add_u32 s30, s30, s31")
        a("s_add_u32 s27, s27, s30")
        a(f"v_lshlrev_b32 v{vT}, 4, v{vLane}")
        if scale is not None:
            a(f"s_mov_b32 s32, 0x{scale:08x}")
        if gelu_bias:
            import struct
            c0 = -2.0 * 0.7978845608028654 * 1.4426950408889634
            fb = lambda x: struct.unpack("<I", struct.pack("<f", x))[0]
            a(f"s_mov_b32 s34, 0x{fb(c0):08x}")
            a(f"s_mov_b32 s35, 0x{fb(c0*0.044715):08x}")
            a(f"s_mul_i32 s30, s{c['sww']}, {fw*64}")
            a("s_add_u32 s33, s33, s30")
            a(f"v_lshrrev_b32 v{vT+1}, 5, v{vLane}")
            a(f"v_lshlrev_b32 v{vT+1}, 3, v{vT+1}")
            vB = vF + 8
            assert vB + fw * 24 <= c["vFreeEnd"] or True
        for iw in range(fw):
            if gelu_bias:
                vB = vF + 8
                for q in range(4):
                    a(f"buffer_load_dwordx2 v[{vB+2*q}:{vB+2*q+1}], v{vT+1}, s[16:19], s33 offen offset:{iw*64 + q*16}")
                a("s_waitcnt vmcnt(0)")
            for ix in range(fx):
                ac = vAcc + (ix * fw + iw) * 16
                if scale is not None:
                    for r in range(16): a(f"v_mul_f32 v{ac+r}, s32, v{ac+r}")
                if gelu_bias:
                    t0, t1 = vT + 2, vT + 3
                    for r in range(16):
                        src = vB + r // 2
                        if r & 1: a(f"v_and_b32 v{t0}, 0xffff0000, v{src}")
                        else: a(f"v_lshlrev_b32 v{t0}, 16, v{src}")
                        a(f"v_add_f32 v{ac+r}, v{ac+r}, v{t0}")
                        a(f"v_mul_f32 v{t0}, v{ac+r}, v{ac+r}")
                        a(f"v_mov_b32 v{t1}, s34")
                        a(f"v_fmac_f32 v{t1}, s35, v{t0}")
                        a(f"v_mul_f32 v{t0}, v{ac+r}, v{t1}")
                        a(f"v_exp_f32 v{t0}, v{t0}")
                        a(f"v_add_f32 v{t0}, 1.0, v{t0}")
                        a(f"v_rcp_f32 v{t0}, v{t0}")
                        a(f"v_mul_f32 v{ac+r}, v{ac+r}, v{t0}")
                for half in range(2):
                    d = vF + 4 * half
                    for p in range(4):
                        a(f"v_cvt_pk_bf16_f32 v{d+p}, v{ac+8*half+2*p}, v{ac+8*half+2*p+1}")
                    off = ix * SX + iw * SW + half * SH
                    a(f"s_add_u32 s30, s27, {off}")
                    a(f"buffer_store_dwordx4 v[{d}:{d+3}], v{vT}, s[12:15], s30 offen")
    return f

def ep_rows(ld, x_is_row):
    def f(a, c):
        vAcc, fx, fw, vLane, vT, vF = c["vAcc"], c["fx"], c["fw"], c["vLane"], c["vT"], c["vFree"]
        if x_is_row: scol, fcol, srow, frow = c["sww"], fw, c["swx"], fx
        else: scol, fcol, srow, frow = c["swx"], fx, c["sww"], fw
        a(f"s_mul_i32 s30, s{scol}, {fcol*32*ld}")
        a(f"s_mul_i32 s31, s{srow}, {frow*64}")
        a("s_add_u32 s30, s30, s31")
        a("s_add_u32 s27, s27, s30")
        a(f"v_and_b32 v{vT}, 31, v{vLane}")
        a(f"s_mov_b32 s30, {ld}")
        a(f"v_mul_u32_u24 v{vT}, s30, v{vT}")
        a(f"v_lshrrev_b32 v{vT+1}, 5, v{vLane}")
        a(f"v_lshl_add_u32 v{vT}, v{vT+1}, 4, v{vT}")
        k = 0
        for ix in range(fx):
            for iw in range(fw):
                ac = vAcc + (ix * fw + iw) * 16
                ic, ir = (iw, ix) if x_is_row else (ix, iw)
                a(f"s_add_u32 s30, s27, {ic*32*ld + ir*64}")
                for p in range(2):
                    d = vF + 4 * (k % 4); k += 1
                    for j in range(4):
                        a(f"v_cvt_pk_bf16_f32 v{d+j}, v{ac+8*p+2*j}, v{ac+8*p+2*j+1}")
                    a(f"v_permlane32_swap_b32 v{d}, v{d+2}")
                    a(f"v_permlane32_swap_b32 v{d+1}, v{d+3}")
                    a(f"buffer_store_dwordx4 v[{d}:{d+3}], v{vT}, s[12:15], s30 offen offset:{p*32}")
    return f
```

```python
from asmlib import *
from gemm import srd, WS, ARG, SZ
import struct
def fb(x): return struct.unpack("<I", struct.pack("<f", x))[0]

def mod_kernel(name="mod_kernel"):
    a = Asm(); head(a, name)
    NWG = 108
    a(f"s_cmp_ge_u32 s2, {NWG}")
    a(f"s_cbranch_scc1 L_end_{name}")
    srd(a, 4, "wmod"); srd(a, 8, "c"); srd(a, 12, "ws")
    a("v_lshrrev_b32 v1, 2, v0")
    a("v_and_b32 v2, 3, v0")
    a("v_lshlrev_b32 v2, 4, v2")
    a("s_mov_b32 s20, 6912")
    a("v_mad_u32_u24 v3, v1, s20, v2")
    a("v_lshlrev_b32 v4, 1, v1")
    a("s_lshl_b32 s21, s2, 6")
    a("s_waitcnt lgkmcnt(0)")
    for i in range(9):
        a(f"buffer_load_ushort v{8+i}, v4, s[8:11], 0 offen offset:{128*i}")
    for i in range(9):
        a(f"s_add_u32 s22, s21, {64*6912*i}")
        a(f"buffer_load_dwordx4 v[{20+4*i}:{23+4*i}], v3, s[4:7], s22 offen")
    for k in range(8): a(f"v_mov_b32 v{60+k}, 0")
    a(f"s_mov_b32 s23, 0x{fb(-1.4426950408889634):08x}")
    a("s_waitcnt vmcnt(9)")
    for i in range(9):
        r = 8 + i
        a(f"v_lshlrev_b32 v{r}, 16, v{r}")
        a(f"v_mul_f32 v5, s23, v{r}")
        a("v_exp_f32 v5, v5")
        a("v_add_f32 v5, 1.0, v5")
        a("v_rcp_f32 v5, v5")
        a(f"v_mul_f32 v{r}, v{r}, v5")
        a(f"v_cvt_pk_bf16_f32 v{r}, v{r}, v{r}")
        a(f"v_lshlrev_b32 v{r}, 16, v{r}")
    for i in range(9):
        a(f"s_waitcnt vmcnt({8-i})")
        for k in range(4):
            w = 20 + 4 * i + k
            a(f"v_lshlrev_b32 v5, 16, v{w}")
            a(f"v_and_b32 v6, 0xffff0000, v{w}")
            a(f"v_fmac_f32 v{60+2*k}, v5, v{8+i}")
            a(f"v_fmac_f32 v{61+2*k}, v6, v{8+i}")
    a("v_lshlrev_b32 v5, 7, v1")
    a("v_lshl_add_u32 v5, v2, 1, v5")
    a("ds_write_b128 v5, v[60:63]")
    a("ds_write_b128 v5, v[64:67] offset:16")
    a("s_waitcnt lgkmcnt(0)")
    a("s_barrier")
    a("v_and_b32 v6, 31, v0")
    a("v_lshrrev_b32 v7, 5, v0")
    a("v_lshlrev_b32 v7, 10, v7")
    a("v_lshl_add_u32 v7, v6, 2, v7")
    for k in range(8): a(f"ds_read_b32 v{20+k}, v7 offset:{128*k}")
    a("s_waitcnt lgkmcnt(0)")
    for k in range(1, 8): a(f"v_add_f32 v20, v20, v{20+k}")
    a("s_barrier")
    a("v_lshlrev_b32 v7, 2, v0")
    a("ds_write_b32 v7, v20")
    a("s_waitcnt lgkmcnt(0)")
    a("s_barrier")
    a("v_lshlrev_b32 v7, 2, v6")
    for k in range(8): a(f"ds_read_b32 v{20+k}, v7 offset:{128*k}")
    a("s_waitcnt lgkmcnt(0)")
    for k in range(1, 8): a(f"v_add_f32 v20, v20, v{20+k}")
    a("v_cvt_pk_bf16_f32 v20, v20, v20")
    a("v_lshlrev_b32 v20, 16, v20")
    a("s_lshl_b32 s22, s2, 7")
    a(f"s_add_u32 s22, s22, {WS['MOD']}")
    a("v_cmp_gt_u32 vcc, 32, v0")
    a("s_and_saveexec_b64 s[24:25], vcc")
    a(f"s_cbranch_execz L_end_{name}")
    a("buffer_store_dword v20, v7, s[12:15], s22 offen")
    a.label(f"L_end_{name}")
    a("s_endpgm")
    return a.finalize(), kd(name, 72), f"; @launch kernel={name} grid=({NWG},1,1) block=(256,1,1) lds=8192"

def row_reduce(a, v, t):
    for s in (8, 4, 2, 1):
        a(f"v_add_f32_dpp v{v}, v{v}, v{v} row_ror:{s} row_mask:0xf bank_mask:0xf")

def unpack(a, dst, src, n):
    for k in range(n):
        a(f"v_lshlrev_b32 v{dst+2*k}, 16, v{src+k}")
        a(f"v_and_b32 v{dst+2*k+1}, 0xffff0000, v{src+k}")

def rnd(a, r):
    a(f"v_cvt_pk_bf16_f32 v{r}, v{r}, v{r}")
    a(f"v_lshlrev_b32 v{r}, 16, v{r}")

def layernorm(a, X, t0, t1):
    a(f"v_add_f32 v{t0}, v{X}, v{X+1}")
    a(f"v_add_f32 v{t1}, v{X+2}, v{X+3}")
    for k in range(4, 36, 2):
        a(f"v_add_f32 v{t0}, v{t0}, v{X+k}")
        a(f"v_add_f32 v{t1}, v{t1}, v{X+k+1}")
    a(f"v_add_f32 v{t0}, v{t0}, v{t1}")
    row_reduce(a, t0, t1)
    a(f"v_mul_f32 v{t0}, s40, v{t0}")
    for k in range(36): a(f"v_sub_f32 v{X+k}, v{X+k}, v{t0}")
    a(f"v_mul_f32 v{t0}, v{X}, v{X}")
    a(f"v_mul_f32 v{t1}, v{X+1}, v{X+1}")
    for k in range(2, 36, 2):
        a(f"v_fmac_f32 v{t0}, v{X+k}, v{X+k}")
        a(f"v_fmac_f32 v{t1}, v{X+k+1}, v{X+k+1}")
    a(f"v_add_f32 v{t0}, v{t0}, v{t1}")
    row_reduce(a, t0, t1)
    a(f"v_mov_b32 v{t1}, s41")
    a(f"v_fmac_f32 v{t1}, s40, v{t0}")
    a(f"v_rsq_f32 v{t1}, v{t1}")
    for k in range(36): a(f"v_mul_f32 v{X+k}, v{X+k}, v{t1}")

def row_kernel(name, mode, S=4):
    a = Asm(); head(a, name)
    NWG = 128
    a(f"s_cmp_ge_u32 s2, {NWG}")
    a(f"s_cbranch_scc1 L_end_{name}")
    srd(a, 12, "ws")
    if mode != "fin": srd(a, 4, "x")
    if mode == "fin": srd(a, 4, "out"); srd(a, 8, "b2")
    a("v_lshrrev_b32 v1, 4, v0")
    a("v_and_b32 v2, 15, v0")
    a("v_lshlrev_b32 v3, 3, v2")
    a("s_mov_b32 s20, 1152")
    a("v_mad_u32_u24 v3, v1, s20, v3")
    a("v_lshlrev_b32 v4, 4, v2")
    a("s_mul_i32 s21, s2, 18432")
    a(f"s_mov_b32 s40, 0x{fb(1.0/576):08x}")
    a(f"s_mov_b32 s41, 0x{fb(1e-5):08x}")
    a("s_waitcnt lgkmcnt(0)")
    RAW = 8
    X = RAW + (S + 1) * 18 + 2
    X = (X + 3) // 4 * 4
    MA = X + 36; MB = MA + 36; MC = MB + 36
    nv = MC + 36
    def load_rows(dst, sb, soff):
        for i in range(9):
            a(f"buffer_load_dwordx2 v[{dst+2*i}:{dst+2*i+1}], v3, s[{sb}:{sb+3}], {soff} offen offset:{128*i}")
    def load_mod(dst, slot):
        a(f"s_mov_b32 s22, {WS['MOD'] + slot*576*4}")
        for i in range(9):
            a(f"buffer_load_dwordx4 v[{dst+4*i}:{dst+4*i+3}], v4, s[12:15], s22 offen offset:{256*i}")
    def store_rows(src, sb, soff):
        for i in range(9):
            d = RAW + 2 * i
            a(f"v_cvt_pk_bf16_f32 v{d}, v{src+4*i}, v{src+4*i+1}")
            a(f"v_cvt_pk_bf16_f32 v{d+1}, v{src+4*i+2}, v{src+4*i+3}")
            a(f"buffer_store_dwordx2 v[{d}:{d+1}], v3, s[{sb}:{sb+3}], {soff} offen offset:{128*i}")
    def sum_partials(dst):
        unpack(a, dst, RAW + 18, 18)
        for p in range(1, S):
            for k in range(18):
                src = RAW + 18 * (p + 1) + k
                a(f"v_lshlrev_b32 v5, 16, v{src}")
                a(f"v_and_b32 v6, 0xffff0000, v{src}")
                a(f"v_add_f32 v{dst+2*k}, v{dst+2*k}, v5")
                a(f"v_add_f32 v{dst+2*k+1}, v{dst+2*k+1}, v6")
    def modulate(Xr, Mc, Ms):
        for k in range(36):
            a(f"v_add_f32 v{Mc+k}, 1.0, v{Mc+k}")
            rnd(a, Mc + k)
        for k in range(36):
            a(f"v_fma_f32 v{Xr+k}, v{Xr+k}, v{Mc+k}, v{Ms+k}")
    if mode == "ln1":
        load_rows(RAW, 4, "s21")
        load_mod(MA, 1); load_mod(MB, 0)
        a("s_waitcnt vmcnt(18)")
        unpack(a, X, RAW, 18)
        layernorm(a, X, 5, 6)
        a("s_waitcnt vmcnt(0)")
        modulate(X, MA, MB)
        a(f"s_add_u32 s22, s21, {WS['H1']}")
        store_rows(X, 12, "s22")
    elif mode == "ln2":
        load_rows(RAW, 4, "s21")
        for p in range(S):
            a(f"s_add_u32 s22, s21, {WS['OP'] + p*2359296}")
            load_rows(RAW + 18 * (p + 1), 12, "s22")
        load_mod(MA, 2); load_mod(MB, 4); load_mod(MC, 3)
        a("s_waitcnt vmcnt(27)")
        sum_partials(X)
        a("s_waitcnt vmcnt(18)")
        for k in range(36):
            rnd(a, X + k)
            a(f"v_mul_f32 v{X+k}, v{X+k}, v{MA+k}")
            rnd(a, X + k)
        unpack(a, MA, RAW, 18)
        for k in range(36):
            a(f"v_add_f32 v{X+k}, v{X+k}, v{MA+k}")
            rnd(a, X + k)
        a(f"s_add_u32 s22, s21, {WS['X1']}")
        store_rows(X, 12, "s22")
        layernorm(a, X, 5, 6)
        a("s_waitcnt vmcnt(9)")
        modulate(X, MB, MC)
        layernorm(a, X, 5, 6)
        a(f"s_add_u32 s22, s21, {WS['H2']}")
        store_rows(X, 12, "s22")
    else:
        a(f"s_add_u32 s22, s21, {WS['X1']}")
        load_rows(RAW, 12, "s22")
        for p in range(S):
            a(f"s_add_u32 s22, s21, {WS['YP'] + p*2359296}")
            load_rows(RAW + 18 * (p + 1), 12, "s22")
        load_mod(MA, 5)
        a("s_lshl_b32 s23, s2, 5")
        a("v_lshlrev_b32 v7, 1, v1")
        a("buffer_load_ushort v7, v7, s[8:11], s23 offen")
        a("s_waitcnt vmcnt(10)")
        sum_partials(X)
        a("s_waitcnt vmcnt(0)")
        a("v_lshlrev_b32 v7, 16, v7")
        for k in range(36):
            rnd(a, X + k)
            a(f"v_add_f32 v{X+k}, v{X+k}, v7")
            rnd(a, X + k)
            a(f"v_mul_f32 v{X+k}, v{X+k}, v{MA+k}")
            rnd(a, X + k)
        unpack(a, MA, RAW, 18)
        for k in range(36):
            a(f"v_add_f32 v{X+k}, v{X+k}, v{MA+k}")
        store_rows(X, 4, "s21")
    a.label(f"L_end_{name}")
    a("s_endpgm")
    return a.finalize(), kd(name, nv), f"; @launch kernel={name} grid=({NWG},1,1) block=(256,1,1) lds=0"
```

```python
import sys, struct
from asmlib import *
from gemm import *
from small import *
from attn import *
def fb(x): return struct.unpack("<I", struct.pack("<f", x))[0]

def dec_proj(xbase, xrowbytes, outbase):
    def f(a):
        a("s_and_b32 s30, s2, 7"); a("s_lshr_b32 s31, s2, 3")
        a("s_lshr_b32 s32, s31, 2")
        a("s_and_b32 s31, s31, 3"); a("s_lshl_b32 s30, s30, 2"); a("s_add_u32 s30, s30, s31")
        a(f"s_mul_i32 s21, s32, {256*xrowbytes}")
        if xbase: a(f"s_add_u32 s21, s21, {xbase}")
        a("s_lshl_b32 s22, s30, 8")
        a("s_lshl_b32 s27, s30, 19"); a("s_lshl_b32 s32, s32, 16"); a("s_add_u32 s27, s27, s32")
        a(f"s_add_u32 s27, s27, {outbase}")
    return f

def dec_split(xbase, xblkstride, xblks, ksteps, wld, wtile_bytes, w_is_mt, outbase):
    def f(a):
        a("s_and_b32 s30, s2, 7"); a("s_lshr_b32 s31, s2, 3")
        a("s_mul_i32 s32, s31, 171"); a("s_lshr_b32 s32, s32, 9")
        a("s_mul_i32 s33, s32, 3"); a("s_sub_u32 s33, s31, s33")
        a("s_and_b32 s31, s30, 1"); a("s_lshl_b32 s31, s31, 3"); a("s_add_u32 s32, s32, s31")
        a("s_lshr_b32 s30, s30, 1")
        xs, wsx = ("s32", "s33") if w_is_mt else ("s33", "s32")
        a(f"s_mul_i32 s21, {xs}, {xblks*xblkstride}")
        a(f"s_mul_i32 s31, s30, {ksteps*1024}")
        a("s_add_u32 s21, s21, s31"); a(f"s_add_u32 s21, s21, {xbase}")
        a(f"s_mul_i32 s22, s30, {ksteps*16*wld}")
        a(f"s_mul_i32 s31, {wsx}, {wtile_bytes}")
        a("s_add_u32 s22, s22, s31")
        a("s_mul_i32 s27, s30, 2359296")
        a(f"s_mul_i32 s31, s32, {128*1152}"); a("s_add_u32 s27, s27, s31")
        a("s_mul_i32 s31, s33, 384"); a("s_add_u32 s27, s27, s31")
        a(f"s_add_u32 s27, s27, {outbase}")
    return f

def dec_mlp1(a):
    a("s_and_b32 s30, s2, 7"); a("s_lshr_b32 s31, s2, 3")
    a("s_mul_i32 s30, s30, 27"); a("s_add_u32 s30, s30, s31")
    a("s_mul_i32 s31, s30, 171"); a("s_lshr_b32 s31, s31, 10")
    a("s_mul_i32 s32, s31, 6"); a("s_sub_u32 s32, s30, s32")
    a("s_mul_i32 s21, s32, 192"); a(f"s_add_u32 s21, s21, {WS['H2']}")
    a("s_lshl_b32 s22, s31, 8")
    a("s_mov_b32 s33, s22")
    a(f"s_mul_i32 s27, s32, {3*294912}"); a("s_lshl_b32 s31, s31, 13"); a("s_add_u32 s27, s27, s31")
    a(f"s_add_u32 s27, s27, {WS['U']}")
assert all((r*171)>>9 == r//3 for r in range(24)) and all((r*171)>>10 == r//6 for r in range(216))

QSCALE = 1.4426950408889634 / (128 ** 0.5)
ks = []
ks.append(mod_kernel())
ks.append(row_kernel("ln1_kernel", "ln1"))
ks.append(gemm_kernel("kproj_kernel", Operand("R", 256, "ckv", ld=1024), Operand("T", 128, "wuk", ld=8192), 4, 2, 8, 3, False,
                      dec_proj(0, 1024, WS["KF"]), ep_frag(8192, 2048, 1024), 256))
ks.append(gemm_kernel("vproj_kernel", Operand("R", 256, "ckv", ld=1024), Operand("T", 128, "wuv", ld=8192), 4, 2, 8, 3, True,
                      dec_proj(0, 1024, WS["VF"]), ep_frag(8192, 1024, 4096), 256))
ks.append(gemm_kernel("qproj_kernel", Operand("R", 256, "ws", ld=1152), Operand("T", 128, "wq", ld=8192), 4, 2, 9, 3, False,
                      dec_proj(WS["H1"], 1152, WS["QF"]), ep_frag(8192, 2048, 1024, scale=fb(QSCALE)), 256))
ks.append(attn_kernel())
ks.append(gemm_kernel("oproj_kernel", Operand("F", 128, "ws", blkstride=262144), Operand("T", 192, "wo", ld=1152, korder="d"), 2, 2, 16, 4, False,
                      dec_split(WS["CTX"], 262144, 4, 64, 1152, 384, True, WS["OP"]), ep_rows(1152, False), 192))
ks.append(row_kernel("ln2_kernel", "ln2"))
ks.append(gemm_kernel("mlp1_kernel", Operand("T", 96, "ws", ld=1152), Operand("T", 128, "w1", ld=9216), 1, 4, 32, 5, False,
                      dec_mlp1, ep_frag(294912, 2048, 1024, gelu_bias=True), 216, extra_srd="b1"))
ks.append(gemm_kernel("mlp2_kernel", Operand("F", 192, "ws", blkstride=294912), Operand("T", 128, "w2", ld=4096, korder="d"), 2, 2, 18, 4, True,
                      dec_split(WS["U"], 294912, 6, 72, 4096, 256, False, WS["YP"]), ep_rows(1152, True), 192))
ks.append(row_kernel("fin_kernel", "fin"))

hdr = open("adaLN_cond__compressed_kv_cla__mixer_token_mlp__prompt.s.ref").read().split("; Override")[0]
out = hdr + "\n".join(k[2] for k in ks) + '\n.amdgcn_target "amdgcn-amd-amdhsa--gfx950"\n.text\n' + "".join(k[0] for k in ks) + \
      '.section .rodata,"a"\n' + "".join(k[1] for k in ks)
dst = sys.argv[1] if len(sys.argv) > 1 else "adaLN_cond__compressed_kv_cla__mixer_token_mlp__prompt.s"
open(dst, "w").write(out)
print("wrote", dst, len(out), "bytes")
```

```python
import re

TRANS = ("v_exp_f32", "v_log_f32", "v_rcp_f32", "v_rsq_f32", "v_sqrt_f32", "v_sin_f32", "v_cos_f32",
         "v_rcp_iflag_f32")

_reg_re = re.compile(r"^(-|\|)?(abs\()?([vas])(\d+|\[(\d+):(\d+)\])\)?\|?$")

def regs_of(op):
    op = op.strip()
    if op in ("vcc", "vcc_lo", "vcc_hi"): return {("vcc", 0)}
    if op in ("exec", "exec_lo", "exec_hi"): return {("exec", 0)}
    if op == "m0": return {("m0", 0)}
    m = _reg_re.match(op)
    if not m: return set()
    f = m.group(3)
    if m.group(5) is not None:
        return {(f, i) for i in range(int(m.group(5)), int(m.group(6)) + 1)}
    return {(f, int(m.group(4)))}

class Ins:
    __slots__ = ("text", "mn", "ops", "mods", "dst", "src", "cls", "passes", "srcC", "srcAB", "data", "dpp")
    def __init__(self, text):
        self.text = text
        t = text.split(";")[0].strip()
        parts = t.split(None, 1)
        self.mn = parts[0]
        rest = parts[1] if len(parts) > 1 else ""
        ops = []; cur = ""; depth = 0
        for ch in rest:
            if ch in "[(": depth += 1
            if ch in "])": depth -= 1
            if ch == "," and depth == 0:
                ops.append(cur.strip()); cur = ""
            else: cur += ch
        if cur.strip(): ops.append(cur.strip())
        mods = ""
        if ops:
            sp = ops[-1].split(None, 1)
            if len(sp) > 1:
                ops[-1] = sp[0]; mods = sp[1]
        self.ops = ops; self.mods = mods
        mn = self.mn
        self.dst = set(); self.src = set(); self.passes = 0; self.srcC = set(); self.srcAB = set(); self.data = set()
        self.dpp = any(k in mods for k in ("row_", "quad_perm", "wave_", "bank_mask", "row_mask"))
        R = [regs_of(o) for o in ops]
        if mn.startswith("v_mfma"):
            self.cls = "mfma"
            self.passes = 8 if "32x32x16" in mn else (4 if "16x16x32" in mn else 16)
            self.dst = R[0]; self.srcAB = R[1] | R[2]; self.srcC = R[3]; self.src = self.srcAB | self.srcC
        elif mn.startswith("v_"):
            self.cls = "trans" if mn.replace("_e32", "").replace("_e64", "") in TRANS else "valu"
            if mn.startswith("v_cmp"):
                self.dst = set(R[0]);
                if mn.startswith("v_cmpx"): self.dst |= {("exec", 0)}
                for r in R[1:]: self.src |= r
            elif mn.startswith("v_permlane") and "swap" in mn:
                self.dst = R[0] | R[1]; self.src = R[0] | R[1]
            elif "_co_" in mn:
                self.dst = R[0] | R[1]
                for r in R[2:]: self.src |= r
            else:
                self.dst = set(R[0]) if R else set()
                for r in R[1:]: self.src |= r
                if mn.startswith(("v_fmac", "v_mac", "v_dot2c", "v_pk_fmac", "v_writelane")) or self.dpp:
                    self.src |= R[0]
                if mn.startswith("v_cndmask") and len(ops) == 3: self.src |= {("vcc", 0)}
        elif mn.startswith("ds_"):
            self.cls = "ds"
            if mn.startswith(("ds_read", "ds_bpermute", "ds_permute", "ds_swizzle")):
                self.dst = R[0]
                for r in R[1:]: self.src |= r
            else:
                for r in R: self.src |= r
        elif mn.startswith(("buffer_", "global_")):
            self.cls = "vmem"
            lds = "lds" in mods.split() or "_lds_" in mn
            if "load" in mn and not lds:
                self.dst = R[0]
                for r in R[1:]: self.src |= r
            elif "atomic" in mn:
                for r in R: self.src |= r
                if "sc0" in mods.split(): self.dst = R[0]
            else:
                for r in R: self.src |= r
                if lds: self.src |= {("m0", 0)}
                if "store" in mn and ("x4" in mn or "x3" in mn):
                    self.data = R[0] if mn.startswith("buffer_") else R[1]
        elif mn.startswith("s_"):
            self.cls = "salu"
            if mn.startswith(("s_cmp", "s_cbranch", "s_branch", "s_waitcnt", "s_barrier", "s_nop", "s_endpgm", "s_setprio", "s_sleep", "s_bitcmp")):
                for r in R: self.src |= r
            else:
                self.dst = set(R[0]) if R else set()
                for r in R[1:]: self.src |= r
                if "saveexec" in mn: self.dst |= {("exec", 0)}
        else:
            raise ValueError("unknown instruction: " + text)
    def states(self):
        if self.mn == "s_nop": return int(self.ops[0], 0) + 1
        return 1

def need(p, c):
    n = 0
    isv = lambda x: x.cls in ("valu", "trans")
    vreg = lambda S: {r for r in S if r[0] in ("v", "a")}
    sreg = lambda S: {r for r in S if r[0] in ("s", "vcc")}
    if isv(p):
        pv = vreg(p.dst); ps = sreg(p.dst)
        if c.cls == "mfma" and pv & c.src: n = max(n, 2)
        if c.cls == "vmem" and ps & c.src: n = max(n, 5)
        if isv(c) and ps & c.src:
            n = max(n, 4 if c.mn.startswith(("v_readlane", "v_writelane")) else 2)
        if c.mn.startswith(("v_readfirstlane", "v_readlane")) and pv & c.src: n = max(n, 1)
        if p.cls == "trans" and c.cls == "valu" and pv & c.src: n = max(n, 1)
        if p.cls == "trans" and c.cls == "mfma" and pv & c.src: n = max(n, 2)
        if c.mn.startswith("v_permlane") and pv & c.src: n = max(n, 2)
        if c.dpp and pv & c.src: n = max(n, 2)
        if ("exec", 0) in p.dst:
            if c.cls == "mfma": n = max(n, 4)
            if c.dpp: n = max(n, 5)
            if c.mn.startswith(("v_readfirstlane", "v_readlane", "v_permlane")): n = max(n, 4)
        if c.cls == "salu" and ps & c.src: n = max(n, 1)
        if ("op_sel" in p.mods or "sdwa" in p.mn or "dst_sel" in p.mods) and isv(c) and pv & (c.src | c.dst): n = max(n, 1)
    if p.cls == "mfma":
        big = {8: 12, 4: 8, 16: 20}[p.passes]; mid = {8: 10, 4: 6, 16: 18}[p.passes]; war = {8: 7, 4: 3, 16: 15}[p.passes]
        if isv(c) and p.dst & (c.src | c.dst): n = max(n, big)
        if c.cls in ("vmem", "ds") and p.dst & (c.src | c.dst): n = max(n, big)
        if c.cls == "mfma":
            if p.dst & c.srcAB: n = max(n, big)
            if p.dst & c.srcC and not (p.dst == c.srcC and p.passes == c.passes): n = max(n, mid)
            if p.dst & c.dst and not (p.dst == c.srcC): n = max(n, mid)
        if isv(c) and p.srcC & c.dst: n = max(n, war)
        if c.cls in ("vmem", "ds") and p.srcC & c.dst: n = max(n, war)
    if p.cls == "vmem" and p.data:
        if isv(c) and p.data & c.dst: n = max(n, 2)
        elif p.data & c.dst: n = max(n, 1)
    if p.cls == "salu" and ("m0", 0) in p.dst and c.cls == "vmem" and ("m0", 0) in c.src: n = max(n, 1)
    return n

class Asm:
    def __init__(self):
        self.items = []
        self.nops = 0
    def __call__(self, text):
        for line in text.split("\n"):
            line = line.strip()
            if not line: continue
            if line.startswith(";") or line.endswith(":") or line.startswith("."):
                self.items.append(line)
            else:
                self.items.append(Ins(line))
    def label(self, l): self.items.append(l + ":")
    def finalize(self, window=24):
        out = []
        hist = []
        def required(c, hist):
            dist = 0; req = 0
            for p in reversed(hist):
                k = need(p, c)
                if k > dist: req = max(req, k - dist)
                dist += p.states()
                if dist > window: break
            return req
        for it in self.items:
            if isinstance(it, str):
                out.append(it); continue
            r = required(it, hist)
            while r > 0:
                k = min(r, 16)
                nop = Ins(f"s_nop {k-1}"); out.append(nop); hist.append(nop); self.nops += 1
                r -= k
            out.append(it); hist.append(it)
            if len(hist) > 64: hist = hist[-64:]
        labels = {x[:-1]: i for i, x in enumerate(out) if isinstance(x, str) and x.endswith(":")}
        for i, it in enumerate(out):
            if isinstance(it, str) or not it.mn.startswith(("s_cbranch", "s_branch")): continue
            tgt = it.ops[0]
            if tgt not in labels: continue
            h = [x for x in out[max(0, i - 64): i + 1] if not isinstance(x, str)]
            j = labels[tgt]; cnt = 0
            while j < len(out) and cnt < window:
                c = out[j]; j += 1
                if isinstance(c, str): continue
                r = required(c, h)
                if r > 0:
                    raise RuntimeError(f"hazard across branch '{it.text}' -> '{c.text}' needs {r} more states")
                h.append(c); cnt += c.states()
                if c.mn in ("s_branch", "s_endpgm"): break
        self.items = out
        return "\n".join((x if isinstance(x, str) else "  " + x.text) for x in out) + "\n"

def kd(name, vgpr, sgpr=96, accum=None):
    if accum is None: accum = (vgpr + 3) // 4 * 4
    return f""".p2align 6
.amdhsa_kernel {name}
  .amdhsa_next_free_vgpr {vgpr}
  .amdhsa_next_free_sgpr {sgpr}
  .amdhsa_accum_offset {accum}
  .amdhsa_group_segment_fixed_size 0
  .amdhsa_kernarg_size 128
  .amdhsa_user_sgpr_count 2
  .amdhsa_user_sgpr_kernarg_segment_ptr 1
  .amdhsa_system_sgpr_workgroup_id_x 1
.end_amdhsa_kernel
"""

def head(a, name):
    a(f".globl {name}\n.p2align 8\n.type {name},@function")
    a.label(name)

def interleave(main, fill, per):
    out = []; fi = 0
    for i, m in enumerate(main):
        out.append(m)
        k = per(i) if callable(per) else per
        for _ in range(k):
            if fi < len(fill): out.append(fill[fi]); fi += 1
    out.extend(fill[fi:])
    return out


STAMP = {"on": False, "kidx": 0}
DBGOFF = 0xF000000
def stamp(a, i, real=False):
    if not STAMP["on"]: return
    a(f"{'s_memrealtime' if real else 's_memtime'} s[{64+2*i}:{65+2*i}]")
def stamp_flush(a, n, ws_srd, extra=0):
    if not STAMP["on"]: return
    k = STAMP["kidx"]; STAMP["kidx"] += 1
    a("s_waitcnt vmcnt(0) lgkmcnt(0)")
    stamp(a, n - 2); stamp(a, n - 1, real=True)
    a("s_waitcnt lgkmcnt(0)")
    a("s_lshl_b32 s62, s2, 6")
    a(f"s_add_u32 s62, s62, {DBGOFF + k*65536}")
    a("s_lshl_b32 s63, s20, 12")
    a("s_cmp_eq_u32 s20, 0")
    a(f"s_cselect_b32 s62, s62, 0x7f000000")
    a("v_mov_b32 v1, 0")
    for i in range(n + extra):
        a(f"v_mov_b32 v2, s{64+2*i}")
        a(f"buffer_store_dword v2, v1, s[{ws_srd}:{ws_srd+3}], s62 offen offset:{4*i}")
```

```python
from asmlib import *
from gemm import srd, WS, OOB
import struct
def fb(x): return struct.unpack("<I", struct.pack("<f", x))[0]

def attn_kernel(name="attn_kernel"):
    a = Asm(); head(a, name)
    stamp(a, 0, real=True); stamp(a, 1)
    NWG = 256
    vLane, vKa, vVa, vDma, vLin, vL0, vL1, vThr, vMx, vT0, vT1, vT2, vNeg = 1, 2, 3, 4, 5, 6, 7, 8, 9, 10, 11, 12, 13
    vNM = 16; vS = [32, 48]; vO = 64; vQ = 128; vF = 160; vP = [192, 200]
    NV = 208
    SPARE = 128 * 1024
    T = 24.0
    rare_blocks = []
    a(f"s_cmp_ge_u32 s2, {NWG}")
    a(f"s_cbranch_scc1 L_end_{name}")
    srd(a, 4, "ws")
    a(f"v_lshrrev_b32 v{vT0}, 6, v0")
    a(f"v_and_b32 v{vLane}, 63, v0")
    a(f"v_readfirstlane_b32 s20, v{vT0}")
    a("s_and_b32 s38, s2, 7")
    a("s_lshr_b32 s39, s2, 3")
    a("s_lshr_b32 s23, s39, 2")
    a("s_and_b32 s39, s39, 3")
    a("s_lshl_b32 s38, s38, 2")
    a("s_add_u32 s33, s38, s39")
    a("s_lshl_b32 s24, s33, 19")
    a("s_and_b32 s21, s20, 3")
    a("s_lshr_b32 s22, s20, 2")
    a(f"v_lshlrev_b32 v{vLin}, 4, v{vLane}")
    a("s_lshl_b32 s38, s20, 12")
    a(f"v_add_u32 v{vDma}, s38, v{vLin}")
    a("s_mov_b32 s28, s38")
    a("s_add_u32 s29, s38, 0x10000")
    a("s_lshl_b32 s39, s22, 14")
    a(f"v_add_u32 v{vKa}, s39, v{vLin}")
    a(f"v_add_u32 v{vVa}, 0x18000, v{vKa}")
    a("s_lshl_b32 s25, s23, 15")
    a("s_add_u32 s25, s25, s24")
    a(f"s_add_u32 s25, s25, {WS['KF']}")
    a("s_mov_b32 s26, s23")
    a("s_sub_u32 s27, 15, s23")
    a("s_mov_b32 s31, s23")
    a("s_mov_b32 s32, 0")
    a(f"v_mov_b32 v{vNeg}, 0x{fb(-1e30):08x}")
    a(f"v_and_b32 v{vT0}, 31, v{vLane}")
    a(f"v_lshrrev_b32 v{vT1}, 5, v{vLane}")
    a(f"v_lshlrev_b32 v{vT1}, 2, v{vT1}")
    a(f"v_sub_u32 v{vT0}, v{vT0}, v{vT1}")
    a("s_lshl_b32 s38, s21, 5")
    a("s_lshl_b32 s39, s22, 6")
    a("s_sub_u32 s38, s38, s39")
    a(f"v_add_u32 v{vThr}, s38, v{vT0}")
    a("s_waitcnt lgkmcnt(0)")

    def dmaK():
        L = ["s_mov_b32 m0, s28"]
        for i in range(4): L.append(f"buffer_load_dwordx4 v{vDma}, s[4:7], s25 offen offset:{1024*i} lds")
        return L
    def dmaV():
        L = ["s_mov_b32 m0, s29"]
        for i in range(4): L.append(f"buffer_load_dwordx4 v{vDma}, s[4:7], s44 offen offset:{1024*i} lds")
        return L
    def advK():
        return [f"s_add_u32 s44, s25, {WS['VF'] - WS['KF']}",
                "s_sub_u32 s45, s26, 1",
                "s_cmp_eq_u32 s26, 0",
                "s_cselect_b32 s26, s27, s45",
                "s_cselect_b32 s27, 0x4000, s27",
                "s_lshl_b32 s25, s26, 15",
                "s_add_u32 s25, s25, s24",
                f"s_add_u32 s25, s25, {WS['KF']}",
                "s_xor_b32 s28, s28, 0x8000"]
    def loadQ():
        L = ["s_lshl_b32 s38, s31, 2", "s_add_u32 s38, s38, s21", "s_lshl_b32 s38, s38, 13",
             "s_add_u32 s38, s38, s24", f"s_add_u32 s38, s38, {WS['QF']}", "s_add_u32 s39, s38, 4096"]
        for k in range(8):
            L.append(f"buffer_load_dwordx4 v[{vQ+4*k}:{vQ+4*k+3}], v{vLin}, s[4:7], s{38 + k//4} offen offset:{1024*(k%4)}")
        return L
    def period_dma():
        return dmaV() + ["s_xor_b32 s29, s29, 0x8000"] + dmaK() + advK()

    for t in dmaK() + advK() + loadQ(): a(t)
    stamp(a, 2)
    a("s_waitcnt vmcnt(0)")
    a("s_barrier")
    stamp(a, 3)
    a("s_waitcnt lgkmcnt(0)")
    for t in period_dma(): a(t)

    def rd(kind, u, k, buf):
        d = vF + 4 * (buf % 8)
        base = vKa if kind == "K" else vVa
        return f"ds_read_b128 v[{d}:{d+3}], v{base} offset:{u*8192 + k*1024}"
    def qk(u, sp, k, buf):
        S = vS[sp]; d = vF + 4 * (buf % 8)
        C = vNM if k == 0 else S
        return f"v_mfma_f32_32x32x16_bf16 v[{S}:{S+15}], v[{d}:{d+3}], v[{vQ+4*k}:{vQ+4*k+3}], v[{C}:{C+15}]"
    def pv(pp, k, buf):
        half, db = k // 4, k % 4
        d = vF + 4 * (buf % 8); O = vO + 16 * db; P = vP[pp] + 4 * half
        return f"v_mfma_f32_32x32x16_bf16 v[{O}:{O+15}], v[{d}:{d+3}], v[{P}:{P+3}], v[{O}:{O+15}]"
    def softmax(sp, pp):
        S = vS[sp]; P = vP[pp]
        L = []
        e = lambda r: f"v_exp_f32 v{S+r}, v{S+r}"
        ad = lambda r: f"v_add_f32 v{vL0 + (r&1)}, v{vL0 + (r&1)}, v{S+r}"
        cv = lambda k: f"v_cvt_pk_bf16_f32 v{P+k}, v{S+2*k}, v{S+2*k+1}"
        L += [e(0), e(1)]
        for r in range(2, 16):
            L.append(e(r)); L.append(ad(r - 2))
            if r % 2 == 1: L.append(cv((r - 3) // 2))
        L += [ad(14), ad(15), cv(7)]
        return L
    def maxtree(sp):
        S = vS[sp]
        L = [f"v_max3_f32 v{vMx}, v{S}, v{S+1}, v{S+2}", f"v_max3_f32 v{vT0}, v{S+3}, v{S+4}, v{S+5}"]
        L += [f"v_max3_f32 v{vMx}, v{vMx}, v{S+6}, v{S+7}", f"v_max3_f32 v{vT0}, v{vT0}, v{S+8}, v{S+9}"]
        L += [f"v_max3_f32 v{vMx}, v{vMx}, v{S+10}, v{S+11}", f"v_max3_f32 v{vT0}, v{vT0}, v{S+12}, v{S+13}"]
        L += [f"v_max3_f32 v{vMx}, v{vMx}, v{S+14}, v{S+15}", f"v_max_f32 v{vMx}, v{vMx}, v{vT0}"]
        return L
    site = [0]
    def check(sp, pp):
        n = site[0]; site[0] += 1
        rare_blocks.append((n, sp, pp))
        return [f"v_cmp_lt_f32 vcc, 0x{fb(T):08x}, v{vMx}", "s_or_b64 s[36:37], vcc, s[34:35]",
                f"s_cbranch_scc1 L_rare{n}_{name}", f"L_back{n}_{name}:"]
    def mask(sp, u):
        S = vS[sp]; L = []
        pr = [48, 50, 52, 54]
        for r in range(18):
            if r < 16:
                off = (r & 3) + 8 * (r >> 2) + 32 * u
                sp_ = pr[r % 4]
                L.append(f"v_cmp_gt_i32 s[{sp_}:{sp_+1}], {off}, v{vThr}")
            if r >= 2:
                q = r - 2; sq = pr[q % 4]
                L.append(f"v_cndmask_b32 v{S+q}, v{S+q}, v{vNeg}, s[{sq}:{sq+1}]")
        return L
    def toggles():
        return [f"v_xor_b32 v{vKa}, 0x8000, v{vKa}", f"v_xor_b32 v{vVa}, 0x8000, v{vVa}"]

    def emit_stream(mf, reads_after, fills):
        for k, m in enumerate(mf):
            for t in m[0]: a(t)
            a(m[1])
            for t in reads_after.get(k, []): a(t)
            for t in fills.get(k, []): a(t)

    def spread(L, lo, hi):
        n = hi - lo + 1; d = {}
        for i, t in enumerate(L):
            d.setdefault(lo + i * n // len(L), []).append(t)
        return d
    def merge_f(*ds):
        o = {}
        for d in ds:
            for k, v in d.items(): o.setdefault(k, []).extend(v)
        return o

    def sync_and_tail(rest, fills, nxt_label_full, nxt_label_drain, tag):
        a("s_waitcnt vmcnt(0) lgkmcnt(0)")
        a("s_barrier")
        for t in toggles(): a(t)
        a("s_sub_u32 s30, s30, 1")
        a("s_cmp_eq_u32 s30, 0")
        a(f"s_cbranch_scc1 L_tailV_{tag}_{name}")
        for kind in ("K", "V"):
            if kind == "V": a.label(f"L_tailV_{tag}_{name}")
            nr = [rd(kind, 0, k, k) for k in range(6)]
            fl = fills(kind)
            for t in nr[:3]: a(t)
            for idx, m in enumerate(rest):
                a(m)
                if idx < 3: a(nr[3 + idx])
                for t in fl.get(idx, []): a(t)
            if kind == "K": a(f"s_branch {nxt_label_full}")
            else:
                if nxt_label_drain: a(f"s_branch {nxt_label_drain}")

    a.label(f"L_qb_{name}")
    stamp(a, 8)
    if STAMP["on"]: a("s_waitcnt lgkmcnt(0)")
    for r in range(64): a(f"v_mov_b32 v{vO+r}, 0")
    for r in range(16): a(f"v_mov_b32 v{vNM+r}, 0")
    a(f"v_mov_b32 v{vL0}, 0"); a(f"v_mov_b32 v{vL1}, 0")
    a("s_mov_b64 s[34:35], -1")
    a("s_add_u32 s30, s31, 1")
    for k in range(6): a(rd("K", 0, k, k))
    a("s_waitcnt vmcnt(12)")
    for k in range(8):
        if k % 2 == 0: a("s_waitcnt lgkmcnt(4)")
        a(qk(0, 0, k, k))
        kk = k + 6
        a(rd("K", kk // 8, kk % 8, kk))
    for t in mask(0, 0) + maxtree(0) + check(0, None): a(t)
    sm = spread(softmax(0, 0), 0, 7)
    for k in range(8, 12):
        if k % 2 == 0: a("s_waitcnt lgkmcnt(4)" if k < 10 else "s_waitcnt lgkmcnt(2)")
        a(qk(1, 1, k - 8, k))
        kk = k + 6
        if kk < 16: a(rd("K", 1, kk - 8, kk))
        for t in sm.get(k - 8, []): a(t)
    def p0_fills(kind):
        d = {i: list(sm.get(4 + i, [])) for i in range(4)}
        d[3] = d[3] + mask(1, 1) + maxtree(1) + check(1, 0)
        return d
    sync_and_tail([qk(1, 1, k - 8, k) for k in range(12, 16)], p0_fills, f"L_full_{name}", f"L_drain_{name}", "p0")

    a(".p2align 3")
    a.label(f"L_full_{name}")
    mf = [qk(0, 0, k, k) for k in range(8)] + [pv(0, k, 8 + k) for k in range(8)] + \
         [qk(1, 1, k, 16 + k) for k in range(8)] + [pv(1, k, 24 + k) for k in range(8)]
    src = [("K", 0, k) for k in range(8)] + [("V", 0, k) for k in range(8)] + [("K", 1, k) for k in range(8)] + [("V", 1, k) for k in range(8)]
    dm = period_dma()
    fA = merge_f(spread(softmax(1, 1), 0, 12), spread(maxtree(0), 11, 15), spread(dm, 0, 15))
    fA[15] = fA[15] + check(0, 1)
    fB = merge_f(spread(softmax(0, 0), 16, 28), spread(maxtree(1), 27, 31))
    for k in range(28):
        if k % 2 == 0:
            outstanding_ok = 4 if k + 5 < 32 else 0
            a(f"s_waitcnt lgkmcnt({4 if k <= 26 else 0})")
        a(mf[k])
        kk = k + 6
        if kk < 32: a(rd(src[kk][0], src[kk][1], src[kk][2], kk))
        for t in (fA.get(k, []) if k < 16 else fB.get(k, [])): a(t)
    def full_fills(kind):
        d = {i: list(fB.get(28 + i, [])) for i in range(4)}
        d[3] = d[3] + check(1, 0)
        return d
    sync_and_tail(mf[28:], full_fills, f"L_full_{name}", None, "full")

    a.label(f"L_drain_{name}")
    stamp(a, 9)
    if STAMP["on"]: a("s_waitcnt lgkmcnt(0)")
    a("s_sub_u32 s46, 15, s23")
    a("s_mov_b32 s47, s31")
    a("s_cmp_eq_u32 s32, 0")
    a("s_cselect_b32 s31, s46, 0x4000")
    mf = [pv(0, k, k) for k in range(8)] + [pv(1, k, 8 + k) for k in range(8)]
    src = [("V", 0, k) for k in range(8)] + [("V", 1, k) for k in range(8)]
    fD = merge_f(spread(softmax(1, 1), 0, 6), spread(loadQ() + period_dma(), 0, 15))
    for k in range(16):
        if k % 2 == 0: a(f"s_waitcnt lgkmcnt({min(4, max(0, 16 - 2 - k))})")
        a(mf[k])
        kk = k + 6
        if kk < 16: a(rd(src[kk][0], src[kk][1], src[kk][2], kk))
        for t in fD.get(k, []): a(t)
    stamp(a, 4)
    a(f"v_add_f32 v{vL0}, v{vL0}, v{vL1}")
    a(f"v_mov_b32 v{vT0}, v{vL0}")
    a(f"v_permlane32_swap_b32 v{vT0}, v{vL0}")
    a(f"v_add_f32 v{vT1}, v{vT0}, v{vL0}")
    a("s_cmp_lg_u64 s[34:35], 0")
    a(f"s_cselect_b32 s38, 0x{fb(-1e30):08x}, 0")
    a(f"v_sub_f32 v{vT0}, s38, v{vNM}")
    ML = SPARE + 0x8000 - 0x800
    a(f"v_and_b32 v{vT2}, 31, v{vLane}")
    a(f"v_lshlrev_b32 v{vT2}, 3, v{vT2}")
    a("s_lshl_b32 s38, s20, 8")
    a(f"s_add_u32 s38, s38, {ML}")
    a(f"v_add_u32 v{vMx}, s38, v{vT2}")
    a(f"ds_write_b64 v{vMx}, v[{vT0}:{vT1}]")
    a(f"v_xor_b32 v{vMx}, 0x400, v{vMx}")
    a("s_waitcnt lgkmcnt(0)")
    a("s_barrier")
    a(f"ds_read_b64 v[14:15], v{vMx}")
    a("s_waitcnt lgkmcnt(0)")
    a(f"v_max_f32 v{vT2}, v{vT0}, v14")
    a(f"v_sub_f32 v{vT0}, v{vT0}, v{vT2}")
    a(f"v_sub_f32 v14, v14, v{vT2}")
    a(f"v_exp_f32 v{vT0}, v{vT0}")
    a("v_exp_f32 v14, v14")
    a(f"v_mul_f32 v{vT1}, v{vT1}, v{vT0}")
    a(f"v_fmac_f32 v{vT1}, v14, v15")
    a(f"v_rcp_f32 v{vT1}, v{vT1}")
    a(f"v_mul_f32 v{vT0}, v{vT0}, v{vT1}")
    a(f"v_and_b32 v{vT2}, 0x18000, v{vVa}")
    a(f"v_add_u32 v{vT2}, v{vT2}, v{vDma}")
    a("s_cmp_eq_u32 s22, 0")
    a(f"s_cbranch_scc0 L_mg1_{name}")
    for g in range(2):
        if g == 1: a.label(f"L_mg1_{name}")
        keep = vO + 32 * g; send = vO + 32 * (1 - g)
        for r in range(32): a(f"v_mul_f32 v{send+r}, v{send+r}, v{vT0}")
        for q in range(4):
            for p in range(4):
                a(f"v_cvt_pk_bf16_f32 v{vF+4*q+p}, v{send+8*q+2*p}, v{send+8*q+2*p+1}")
            a(f"ds_write_b128 v{vT2}, v[{vF+4*q}:{vF+4*q+3}] offset:{1024*q}")
        if g == 0:
            for r in range(32): a(f"v_mov_b32 v{vS[0]+r}, v{keep+r}")
            a(f"s_branch L_mg2_{name}")
        else:
            for r in range(32): a(f"v_mov_b32 v{vS[0]+r}, v{keep+r}")
    a.label(f"L_mg2_{name}")
    a(f"v_xor_b32 v{vT2}, 0x4000, v{vT2}")
    a("s_waitcnt lgkmcnt(0)")
    a("s_barrier")
    for q in range(4): a(f"ds_read_b128 v[{vF+16+4*q}:{vF+16+4*q+3}], v{vT2} offset:{1024*q}")
    a("s_lshl_b32 s38, s47, 2")
    a("s_add_u32 s38, s38, s21")
    a("s_lshl_b32 s38, s38, 18")
    a("s_lshl_b32 s39, s33, 13")
    a("s_add_u32 s38, s38, s39")
    a("s_lshl_b32 s39, s22, 12")
    a("s_add_u32 s38, s38, s39")
    a(f"s_add_u32 s38, s38, {WS['CTX']}")
    K0 = vS[0]
    for q in range(4):
        a(f"s_waitcnt lgkmcnt({3-q})")
        for p in range(4):
            src_ = vF + 16 + 4 * q + p
            a(f"v_lshlrev_b32 v14, 16, v{src_}")
            a(f"v_and_b32 v15, 0xffff0000, v{src_}")
            a(f"v_fmac_f32 v14, v{K0+8*q+2*p}, v{vT0}")
            a(f"v_fmac_f32 v15, v{K0+8*q+2*p+1}, v{vT0}")
            a(f"v_cvt_pk_bf16_f32 v{vF+4*q+p}, v14, v15")
        a(f"buffer_store_dwordx4 v[{vF+4*q}:{vF+4*q+3}], v{vLin}, s[4:7], s38 offen offset:{1024*q}")
    a("s_add_u32 s32, s32, 1")
    a("s_cmp_eq_u32 s32, 1")
    a(f"s_cbranch_scc1 L_qb_{name}")
    stamp(a, 5)
    stamp_flush(a, 8, 4, extra=2)
    a("s_endpgm")
    for (n, sp, pp) in rare_blocks:
        S = vS[sp]
        a.label(f"L_rare{n}_{name}")
        a(f"v_mov_b32 v{vT0}, v{vMx}")
        a(f"v_permlane32_swap_b32 v{vT0}, v{vMx}")
        a(f"v_max_f32 v{vMx}, v{vMx}, v{vT0}")
        a("s_cmp_lg_u64 s[34:35], 0")
        a(f"s_cbranch_scc0 L_rs{n}_{name}")
        a(f"v_cmp_lt_f32 vcc, 0x{fb(-1e29):08x}, v{vMx}")
        a(f"s_cbranch_vccz L_back{n}_{name}")
        a("s_mov_b64 s[34:35], 0")
        a(f"s_branch L_ra{n}_{name}")
        a.label(f"L_rs{n}_{name}")
        a(f"v_max_f32 v{vMx}, 0, v{vMx}")
        a(f"v_sub_f32 v{vT0}, 0, v{vMx}")
        a(f"v_exp_f32 v{vT0}, v{vT0}")
        a("s_nop 15")
        for r in range(64): a(f"v_mul_f32 v{vO+r}, v{vO+r}, v{vT0}")
        a(f"v_mul_f32 v{vL0}, v{vL0}, v{vT0}")
        a(f"v_mul_f32 v{vL1}, v{vL1}, v{vT0}")
        if pp is not None:
            for k in range(8):
                P = vP[pp] + k
                a(f"v_lshlrev_b32 v{vT1}, 16, v{P}")
                a(f"v_and_b32 v{vT2}, 0xffff0000, v{P}")
                a(f"v_mul_f32 v{vT1}, v{vT1}, v{vT0}")
                a(f"v_mul_f32 v{vT2}, v{vT2}, v{vT0}")
                a(f"v_cvt_pk_bf16_f32 v{P}, v{vT1}, v{vT2}")
        a.label(f"L_ra{n}_{name}")
        for r in range(16): a(f"v_sub_f32 v{S+r}, v{S+r}, v{vMx}")
        for r in range(16): a(f"v_sub_f32 v{vNM+r}, v{vNM+r}, v{vMx}")
        a("s_nop 1")
        a(f"s_branch L_back{n}_{name}")
    a.label(f"L_end_{name}")
    a("s_endpgm")
    return a.finalize(), kd(name, NV), f"; @launch kernel={name} grid=({NWG},1,1) block=(512,1,1) lds={160*1024}"
```

```python
from asmlib import *

ARG = dict(x=0, ckv=8, wq=16, wuk=24, wuv=32, wo=40, bx=48, w1=56, b1=64, w2=72, b2=80, c=88, wmod=96, out=104, dbg=112, ws=120)
SZ = dict(x=2048*576*2, ckv=2048*512*2, wq=576*4096*2, wuk=512*4096*2, wuv=512*4096*2, wo=4096*576*2,
          w1=2048*4608*2, b1=4608*2, w2=4608*2048*2, b2=2048*2, c=576*2, wmod=576*3456*2, out=2048*576*2, dbg=256, ws=0x10000000)
WS = dict(MOD=0, H1=0x10000, X1=0x250000, H2=0x490000, U=0x6D0000, QF=0x1000000, KF=0x2000000, VF=0x3000000,
          CTX=0x4000000, OP=0x5000000, YP=0x7000000)
OOB = 0x7F000000
ABL = set()

def srd(a, s, name):
    a(f"s_load_dwordx2 s[{s}:{s+1}], s[0:1], {ARG[name]}")
    a(f"s_mov_b32 s{s+2}, 0x{SZ[name]:x}")
    a(f"s_mov_b32 s{s+3}, 0x00020000")

def divc(a, dst, src, c, tmp_s):
    if c & (c - 1) == 0:
        a(f"v_lshrrev_b32 v{dst}, {c.bit_length()-1}, v{src}")
    else:
        magic = (1 << 16) // c + 1
        assert all((x * magic) >> 16 == x // c for x in range(1024)), c
        a(f"s_mov_b32 s{tmp_s}, {magic}")
        a(f"v_mul_u32_u24 v{dst}, s{tmp_s}, v{src}")
        a(f"v_lshrrev_b32 v{dst}, 16, v{dst}")

class Operand:
    def __init__(self, mode, T, buf, ld=None, blkstride=None, korder="nat"):
        self.mode = mode; self.T = T; self.buf = buf; self.ld = ld; self.blkstride = blkstride; self.korder = korder
        self.nblk = T // 32
        self.bytes = T * 128
        self.chunks = self.bytes // 1024
        self.adv = {"R": 128, "T": 64 * (ld or 0), "F": 4096}[mode]

def gemm_kernel(name, X, W, wx, ww, NS, R, x_is_row, decode, epilogue, nwg, extra_srd=None, out_buf="ws"):
    a = Asm()
    nw = wx * ww
    fx = X.nblk // wx; fw = W.nblk // ww
    assert fx * wx == X.nblk and fw * ww == W.nblk
    assert X.chunks % nw == 0 and W.chunks % nw == 0, (X.chunks, W.chunks, nw)
    ndx = X.chunks // nw; ndw = W.chunks // nw; nd = ndx + ndw
    slot = X.bytes + W.bytes
    lds = slot * R
    assert lds <= 160 * 1024
    v = 1
    vLane = v; v += 1
    vT0 = v; vT1 = v + 1; vT2 = v + 2; vT3 = v + 3; v += 4
    vDX = v; v += ndx
    vDW = v; v += ndw
    nrx = 4 if X.mode == "R" else 1
    vRX = v; v += nrx
    vRW = v; v += 1
    vCX = v; v += nrx
    vCW = v; v += 1
    v = (v + 3) // 4 * 4
    vFX = v; v += 2 * fx * 4
    vFW = v; v += 2 * fw * 4
    vAcc = v; v += fx * fw * 16
    vEnd = v
    head(a, name)
    stamp(a, 0, real=True); stamp(a, 1)
    a(f"s_cmp_ge_u32 s2, {nwg}")
    a(f"s_cbranch_scc1 L_end_{name}")
    srd(a, 4, X.buf); srd(a, 8, W.buf); srd(a, 12, out_buf)
    if extra_srd: srd(a, 16, extra_srd)
    a(f"v_lshrrev_b32 v{vT0}, 6, v0")
    a(f"v_and_b32 v{vLane}, 63, v0")
    a(f"v_readfirstlane_b32 s20, v{vT0}")
    decode(a)
    a(f"s_and_b32 s28, s20, {wx-1}" if wx & (wx-1) == 0 else "")
    assert wx & (wx - 1) == 0
    a(f"s_lshr_b32 s29, s20, {wx.bit_length()-1}")
    def dma_offsets(op, vD, nI):
        for i in range(nI):
            if op.mode == "R":
                a(f"s_lshl_b32 s30, s20, 3")
                a(f"v_lshrrev_b32 v{vT0}, 3, v{vLane}")
                a(f"v_add3_u32 v{vT0}, v{vT0}, s30, {0}" if False else f"v_add_u32 v{vT0}, s30, v{vT0}")
                if i: a(f"v_add_u32 v{vT0}, {8*nw*i}, v{vT0}")
                a(f"v_bfe_u32 v{vT1}, v{vT0}, 1, 3")
                a(f"v_and_b32 v{vT2}, 7, v{vLane}")
                a(f"v_xor_b32 v{vT1}, v{vT1}, v{vT2}")
                a(f"v_lshlrev_b32 v{vT1}, 4, v{vT1}")
                a(f"s_mov_b32 s30, {op.ld}")
                a(f"v_mad_u32_u24 v{vD+i}, v{vT0}, s30, v{vT1}")
            elif op.mode == "T":
                a(f"s_lshl_b32 s30, s20, 2")
                a(f"v_lshrrev_b32 v{vT0}, 4, v{vLane}")
                a(f"v_add_u32 v{vT0}, s30, v{vT0}")
                if i: a(f"v_add_u32 v{vT0}, {4*nw*i}, v{vT0}")
                divc(a, vT1, vT0, op.nblk, 30)
                a(f"v_mul_u32_u24 v{vT2}, {op.nblk}, v{vT1}")
                a(f"v_sub_u32 v{vT2}, v{vT0}, v{vT2}")
                a(f"v_bfe_u32 v{vT0}, v{vLane}, 2, 2")
                a(f"v_lshl_add_u32 v{vT1}, v{vT1}, 2, v{vT0}")
                a(f"v_and_b32 v{vT0}, 3, v{vLane}")
                a(f"v_lshlrev_b32 v{vT0}, 4, v{vT0}")
                a(f"v_lshl_add_u32 v{vT0}, v{vT2}, 6, v{vT0}")
                a(f"s_mov_b32 s30, {op.ld}")
                a(f"v_mad_u32_u24 v{vD+i}, v{vT1}, s30, v{vT0}")
            else:
                a(f"s_add_u32 s30, s20, {nw*i}")
                a(f"s_lshr_b32 s31, s30, 2")
                a(f"s_mul_i32 s31, s31, {op.blkstride}")
                a(f"s_and_b32 s30, s30, 3")
                a(f"s_lshl_b32 s30, s30, 10")
                a(f"s_add_u32 s30, s30, s31")
                a(f"v_lshlrev_b32 v{vT0}, 4, v{vLane}")
                a(f"v_add_u32 v{vD+i}, s30, v{vT0}")
    dma_offsets(X, vDX, ndx); dma_offsets(W, vDW, ndw)
    a(f"s_lshl_b32 s23, s20, 10")
    a("s_waitcnt lgkmcnt(0)")
    def dma_list():
        L = []
        for i in range(ndx):
            L.append([f"s_add_u32 m0, s23, {i*nw*1024}", f"buffer_load_dwordx4 v{vDX+i}, s[4:7], s21 offen lds"])
        for i in range(ndw):
            L.append([f"s_add_u32 m0, s23, {X.bytes + i*nw*1024}", f"buffer_load_dwordx4 v{vDW+i}, s[8:11], s22 offen lds"])
        return L
    def dma_advance():
        return [f"s_add_u32 s21, s21, {X.adv}", f"s_add_u32 s22, s22, {W.adv}"]
    for r in range(R):
        assert r < NS
        for p in dma_list():
            a(p[0]); a(p[1])
        for t in dma_advance(): a(t)
        if r < R - 1: a(f"s_add_u32 s23, s23, {slot}")
    stamp(a, 2)
    a(f"s_lshl_b32 s23, s20, 10")
    def read_base(op, vR, swv, f, region):
        if op.mode == "R":
            a(f"s_mul_i32 s30, s{swv}, {f*4096}")
            a(f"v_and_b32 v{vT0}, 31, v{vLane}")
            a(f"v_bfe_u32 v{vT1}, v{vLane}, 1, 3")
            a(f"v_lshrrev_b32 v{vT2}, 5, v{vLane}")
            a(f"v_lshlrev_b32 v{vT0}, 7, v{vT0}")
            a(f"v_add_u32 v{vT0}, s30, v{vT0}")
            for ks in range(4):
                a(f"v_add_u32 v{vT3}, {2*ks}, v{vT2}")
                a(f"v_xor_b32 v{vT3}, v{vT3}, v{vT1}")
                a(f"v_lshl_add_u32 v{vR+ks}, v{vT3}, 4, v{vT0}")
                if region: a(f"v_add_u32 v{vR+ks}, {region}, v{vR+ks}")
        elif op.mode == "T":
            mul = (2 if op.korder == "nat" else 1) * op.nblk * 256
            a(f"s_mul_i32 s30, s{swv}, {f*256}")
            if region: a(f"s_add_u32 s30, s30, {region}")
            a(f"v_lshrrev_b32 v{vT0}, 5, v{vLane}")
            a(f"v_mul_u32_u24 v{vT0}, {mul}, v{vT0}")
            a(f"v_bfe_u32 v{vT1}, v{vLane}, 2, 2")
            a(f"v_lshl_add_u32 v{vT0}, v{vT1}, 6, v{vT0}")
            a(f"v_bfe_u32 v{vT1}, v{vLane}, 4, 1")
            a(f"v_lshl_add_u32 v{vT0}, v{vT1}, 5, v{vT0}")
            a(f"v_and_b32 v{vT1}, 3, v{vLane}")
            a(f"v_lshl_add_u32 v{vT0}, v{vT1}, 3, v{vT0}")
            a(f"v_add_u32 v{vR}, s30, v{vT0}")
        else:
            a(f"s_mul_i32 s30, s{swv}, {f*4096}")
            if region: a(f"s_add_u32 s30, s30, {region}")
            a(f"v_lshlrev_b32 v{vT0}, 4, v{vLane}")
            a(f"v_add_u32 v{vR}, s30, v{vT0}")
    read_base(X, vRX, 28, fx, 0); read_base(W, vRW, 29, fw, X.bytes)
    def reads(op, vC, vF, f, ks, par):
        L = []
        for j in range(f):
            d = vF + (par * f + j) * 4
            if op.mode == "R":
                L.append(f"ds_read_b128 v[{d}:{d+3}], v{vC+ks} offset:{j*4096}")
            elif op.mode == "F":
                L.append(f"ds_read_b128 v[{d}:{d+3}], v{vC} offset:{(j*4+ks)*1024}")
            else:
                st = 1 if op.korder == "nat" else 2
                for q in range(2):
                    off = (4 * ks + q * st) * op.nblk * 256 + j * 256
                    L.append(f"ds_read_b64_tr_b16 v[{d+2*q}:{d+2*q+1}], v{vC} offset:{off}")
        return L
    def all_reads(ks, par):
        rx = reads(X, vCX, vFX, fx, ks, par); rw = reads(W, vCW, vFW, fw, ks, par)
        out = []
        nx = len(rx) // fx; nwr = len(rw) // fw
        out += rx[:nx] + rw[:nwr]
        rest_x = rx[nx:]; rest_w = rw[nwr:]
        out += rest_w + rest_x
        if "noread" in ABL: out = ["s_nop 0"]
        return out
    def set_cur():
        L = []
        for k in range(nrx): L.append(f"v_add_u32 v{vCX+k}, s24, v{vRX+k}")
        L.append(f"v_add_u32 v{vCW}, s24, v{vRW}")
        return L
    def mfmas(par):
        L = []
        for ix in range(fx):
            for iw in range(fw):
                c = vAcc + (ix * fw + iw) * 16
                xr = vFX + (par * fx + ix) * 4; wr = vFW + (par * fw + iw) * 4
                A, B = (xr, wr) if x_is_row else (wr, xr)
                L.append(f"v_mfma_f32_32x32x16_bf16 v[{c}:{c+15}], v[{A}:{A+3}], v[{B}:{B+3}], v[{c}:{c+15}]")
        if "nomfma" in ABL: L = ["s_nop 0"] * len(L)
        return L
    for r in range(vAcc, vEnd): a(f"v_mov_b32 v{r}, 0")
    a("s_mov_b32 s24, 0")
    for t in set_cur(): a(t)
    a(f"s_mov_b32 s25, {NS}")
    a(f"s_waitcnt vmcnt({(R-1)*nd})")
    a("s_barrier")
    stamp(a, 3)
    for t in all_reads(0, 0): a(t)
    a(".p2align 3")
    a.label(f"L_loop_{name}")
    nm = fx * fw
    for ks in range(4):
        par = ks & 1
        M = mfmas(par)
        a("s_waitcnt lgkmcnt(0)")
        if ks < 3:
            F = all_reads(ks + 1, par ^ 1)
            per = -(-len(F) // max(1, nm - 1)) if nm > 1 else len(F)
            for t in interleave(M, F, per): a(t)
        else:
            pre = [f"s_add_u32 s24, s24, {slot}", f"s_cmp_eq_u32 s24, {lds}", "s_cselect_b32 s24, 0, s24"] + set_cur()
            a(M[0])
            for t in pre: a(t)
            a(f"s_cmp_le_u32 s25, {R}")
            a(f"s_cselect_b32 s21, {OOB}, s21")
            a(f"s_cselect_b32 s22, {OOB}, s22")
            if nm > 2: a(M[1])
            a(f"s_waitcnt vmcnt({(R-2)*nd})")
            a("s_barrier")
            rest = M[2:] if nm > 2 else M[1:]
            F = all_reads(0, par ^ 1)
            D = []
            for p in dma_list(): D += p
            if "nodma" in ABL: D = []
            fill = F + D + dma_advance() + [f"s_add_u32 s23, s23, {slot}", f"s_sub_u32 s26, s23, {lds}",
                     f"s_cmp_ge_u32 s23, {lds}", "s_cselect_b32 s23, s26, s23"]
            if rest:
                per = -(-len(fill) // len(rest))
                seq = []
                fi = 0
                for m in rest:
                    seq += fill[fi:fi+per]; fi += per
                    seq.append(m)
                seq += fill[fi:]
            else: seq = fill
            for t in seq: a(t)
    a("s_sub_u32 s25, s25, 1")
    a("s_cmp_lg_u32 s25, 0")
    a(f"s_cbranch_scc1 L_loop_{name}")
    stamp(a, 4)
    a("s_waitcnt lgkmcnt(0)")
    ctx = dict(vAcc=vAcc, fx=fx, fw=fw, vLane=vLane, vT=vT0, vFree=vFX, vFreeEnd=vAcc, swx=28, sww=29)
    epilogue(a, ctx)
    stamp(a, 5)
    stamp_flush(a, 8, 12)
    a.label(f"L_end_{name}")
    a("s_endpgm")
    text = a.finalize()
    return text, kd(name, vEnd), f"; @launch kernel={name} grid=({nwg},1,1) block=({nw*64},1,1) lds={lds}"

def ep_frag(SX, SW, SH, scale=None, gelu_bias=False):
    def f(a, c):
        vAcc, fx, fw, vLane, vT, vF = c["vAcc"], c["fx"], c["fw"], c["vLane"], c["vT"], c["vFree"]
        a(f"s_mul_i32 s30, s{c['swx']}, {fx*SX}")
        a(f"s_mul_i32 s31, s{c['sww']}, {fw*SW}")
        a("s_add_u32 s30, s30, s31")
        a("s_add_u32 s27, s27, s30")
        a(f"v_lshlrev_b32 v{vT}, 4, v{vLane}")
        if scale is not None:
            a(f"s_mov_b32 s32, 0x{scale:08x}")
        if gelu_bias:
            import struct
            c0 = -2.0 * 0.7978845608028654 * 1.4426950408889634
            fb = lambda x: struct.unpack("<I", struct.pack("<f", x))[0]
            a(f"s_mov_b32 s34, 0x{fb(c0):08x}")
            a(f"s_mov_b32 s35, 0x{fb(c0*0.044715):08x}")
            a(f"s_mul_i32 s30, s{c['sww']}, {fw*64}")
            a("s_add_u32 s33, s33, s30")
            a(f"v_lshrrev_b32 v{vT+1}, 5, v{vLane}")
            a(f"v_lshlrev_b32 v{vT+1}, 3, v{vT+1}")
            vB = vF + 8
            assert vB + fw * 24 <= c["vFreeEnd"] or True
        for iw in range(fw):
            if gelu_bias:
                vB = vF + 8
                for q in range(4):
                    a(f"buffer_load_dwordx2 v[{vB+2*q}:{vB+2*q+1}], v{vT+1}, s[16:19], s33 offen offset:{iw*64 + q*16}")
                a("s_waitcnt vmcnt(0)")
            for ix in range(fx):
                ac = vAcc + (ix * fw + iw) * 16
                if scale is not None:
                    for r in range(16): a(f"v_mul_f32 v{ac+r}, s32, v{ac+r}")
                if gelu_bias:
                    t0, t1 = vT + 2, vT + 3
                    for r in range(16):
                        src = vB + r // 2
                        if r & 1: a(f"v_and_b32 v{t0}, 0xffff0000, v{src}")
                        else: a(f"v_lshlrev_b32 v{t0}, 16, v{src}")
                        a(f"v_add_f32 v{ac+r}, v{ac+r}, v{t0}")
                        a(f"v_mul_f32 v{t0}, v{ac+r}, v{ac+r}")
                        a(f"v_mov_b32 v{t1}, s34")
                        a(f"v_fmac_f32 v{t1}, s35, v{t0}")
                        a(f"v_mul_f32 v{t0}, v{ac+r}, v{t1}")
                        a(f"v_exp_f32 v{t0}, v{t0}")
                        a(f"v_add_f32 v{t0}, 1.0, v{t0}")
                        a(f"v_rcp_f32 v{t0}, v{t0}")
                        a(f"v_mul_f32 v{ac+r}, v{ac+r}, v{t0}")
                for half in range(2):
                    d = vF + 4 * half
                    for p in range(4):
                        a(f"v_cvt_pk_bf16_f32 v{d+p}, v{ac+8*half+2*p}, v{ac+8*half+2*p+1}")
                    off = ix * SX + iw * SW + half * SH
                    a(f"s_add_u32 s30, s27, {off}")
                    a(f"buffer_store_dwordx4 v[{d}:{d+3}], v{vT}, s[12:15], s30 offen")
    return f

def ep_rows(ld, x_is_row):
    def f(a, c):
        vAcc, fx, fw, vLane, vT, vF = c["vAcc"], c["fx"], c["fw"], c["vLane"], c["vT"], c["vFree"]
        if x_is_row: scol, fcol, srow, frow = c["sww"], fw, c["swx"], fx
        else: scol, fcol, srow, frow = c["swx"], fx, c["sww"], fw
        a(f"s_mul_i32 s30, s{scol}, {fcol*32*ld}")
        a(f"s_mul_i32 s31, s{srow}, {frow*64}")
        a("s_add_u32 s30, s30, s31")
        a("s_add_u32 s27, s27, s30")
        a(f"v_and_b32 v{vT}, 31, v{vLane}")
        a(f"s_mov_b32 s30, {ld}")
        a(f"v_mul_u32_u24 v{vT}, s30, v{vT}")
        a(f"v_lshrrev_b32 v{vT+1}, 5, v{vLane}")
        a(f"v_lshl_add_u32 v{vT}, v{vT+1}, 4, v{vT}")
        k = 0
        for ix in range(fx):
            for iw in range(fw):
                ac = vAcc + (ix * fw + iw) * 16
                ic, ir = (iw, ix) if x_is_row else (ix, iw)
                a(f"s_add_u32 s30, s27, {ic*32*ld + ir*64}")
                for p in range(2):
                    d = vF + 4 * (k % 4); k += 1
                    for j in range(4):
                        a(f"v_cvt_pk_bf16_f32 v{d+j}, v{ac+8*p+2*j}, v{ac+8*p+2*j+1}")
                    a(f"v_permlane32_swap_b32 v{d}, v{d+2}")
                    a(f"v_permlane32_swap_b32 v{d+1}, v{d+3}")
                    a(f"buffer_store_dwordx4 v[{d}:{d+3}], v{vT}, s[12:15], s30 offen offset:{p*32}")
    return f
```

```python
from asmlib import *
from gemm import ARG, SZ, WS, OOB, srd, divc, Operand, ABL

class Phase:
    def __init__(self, x_is_row, epilogue, wbuf):
        self.x_is_row = x_is_row; self.epilogue = epilogue; self.wbuf = wbuf

def gemm2_kernel(name, X, W, wx, ww, NS, R, phases, decode, nwg, extra_srd=None, out_buf="ws", pre=None, post=None, lds_extra=0):
    a = Asm()
    NC = 4; NL = 4
    assert wx * ww == NC
    fx = X.nblk // wx; fw = W.nblk // ww
    assert fx * wx == X.nblk and fw * ww == W.nblk
    assert X.chunks % NL == 0 and W.chunks % NL == 0
    ndx = X.chunks // NL; ndw = W.chunks // NL; nd = ndx + ndw
    slot = X.bytes + W.bytes
    lds = slot * R
    assert lds + lds_extra <= 160 * 1024
    NP = len(phases); G = NS * NP
    v = 1
    vLane = v; v += 1
    vT0 = v; vT1 = v + 1; vT2 = v + 2; vT3 = v + 3; v += 4
    nrx = 4 if X.mode == "R" else 1
    vRX = v; v += nrx
    vRW = v; v += 1
    vCX = v; v += nrx
    vCW = v; v += 1
    v = (v + 3) // 4 * 4
    vE = v; v += 16
    vFX = v; v += 2 * fx * 4
    vFW = v; v += 2 * fw * 4
    vAcc = v; v += fx * fw * 16
    vEnd = v
    vDX = 8; vDW = vDX + ndx
    assert vDW + ndw <= vEnd
    head(a, name)
    stamp(a, 0, real=True); stamp(a, 1)
    a(f"s_cmp_ge_u32 s2, {nwg}")
    a(f"s_cbranch_scc1 L_end_{name}")
    srd(a, 4, X.buf); srd(a, 8, phases[0].wbuf)
    if NP > 1: a(f"s_load_dwordx2 s[40:41], s[0:1], {ARG[phases[1].wbuf]}")
    srd(a, 12, out_buf)
    if extra_srd: srd(a, 16, extra_srd)
    a(f"v_lshrrev_b32 v{vT0}, 6, v0")
    a(f"v_and_b32 v{vLane}, 63, v0")
    a(f"v_readfirstlane_b32 s20, v{vT0}")
    decode(a)
    a("s_cmp_ge_u32 s20, 4")
    a(f"s_cbranch_scc0 L_cons_{name}")
    a("s_sub_u32 s20, s20, 4")
    def dma_offsets(op, vD, nI):
        if op.mode == "R":
            a(f"s_lshl_b32 s30, s20, 3")
            a(f"v_lshrrev_b32 v{vT0}, 3, v{vLane}")
            a(f"v_add_u32 v{vT0}, s30, v{vT0}")
            a(f"v_bfe_u32 v{vT1}, v{vT0}, 1, 3")
            a(f"v_and_b32 v{vT2}, 7, v{vLane}")
            a(f"v_xor_b32 v{vT1}, v{vT1}, v{vT2}")
            a(f"v_lshlrev_b32 v{vT1}, 4, v{vT1}")
            a(f"s_mov_b32 s30, {op.ld}")
            a(f"v_mad_u32_u24 v{vD}, v{vT0}, s30, v{vT1}")
            for i in range(1, nI): a(f"v_add_u32 v{vD+i}, {8*NL*i*op.ld}, v{vD}")
        elif op.mode == "T" and op.nblk == 4:
            a(f"s_lshl_b32 s30, s20, 2")
            a(f"v_bfe_u32 v{vT0}, v{vLane}, 2, 2")
            a(f"v_add_u32 v{vT0}, s30, v{vT0}")
            a(f"v_and_b32 v{vT1}, 3, v{vLane}")
            a(f"v_lshlrev_b32 v{vT1}, 4, v{vT1}")
            a(f"v_lshrrev_b32 v{vT2}, 4, v{vLane}")
            a(f"v_lshl_add_u32 v{vT1}, v{vT2}, 6, v{vT1}")
            a(f"s_mov_b32 s30, {op.ld}")
            a(f"v_mad_u32_u24 v{vD}, v{vT0}, s30, v{vT1}")
            for i in range(1, nI): a(f"v_add_u32 v{vD+i}, {4*NL*i*op.ld}, v{vD}")
        elif op.mode == "T":
            a(f"s_lshl_b32 s30, s20, 2")
            a(f"v_lshrrev_b32 v{vT3}, 4, v{vLane}")
            a(f"v_add_u32 v{vT3}, s30, v{vT3}")
            for i in range(nI):
                if i: a(f"v_add_u32 v{vT3}, {4*NL}, v{vT3}")
                divc(a, vT1, vT3, op.nblk, 30)
                a(f"v_mul_u32_u24 v{vT2}, {op.nblk}, v{vT1}")
                a(f"v_sub_u32 v{vT2}, v{vT3}, v{vT2}")
                a(f"v_bfe_u32 v{vT0}, v{vLane}, 2, 2")
                a(f"v_lshl_add_u32 v{vT1}, v{vT1}, 2, v{vT0}")
                a(f"v_and_b32 v{vT0}, 3, v{vLane}")
                a(f"v_lshlrev_b32 v{vT0}, 4, v{vT0}")
                a(f"v_lshl_add_u32 v{vT0}, v{vT2}, 6, v{vT0}")
                a(f"s_mov_b32 s30, {op.ld}")
                a(f"v_mad_u32_u24 v{vD+i}, v{vT1}, s30, v{vT0}")
        else:
            a(f"s_lshl_b32 s30, s20, 10")
            a(f"v_lshlrev_b32 v{vT0}, 4, v{vLane}")
            a(f"v_add_u32 v{vD}, s30, v{vT0}")
            for i in range(1, nI): a(f"v_add_u32 v{vD+i}, {i*op.blkstride}, v{vD}")
    a(f"s_mul_i32 s30, s26, {X.adv}"); a("s_add_u32 s21, s21, s30")
    a(f"s_mul_i32 s30, s26, {W.adv}"); a("s_add_u32 s22, s22, s30")
    a(f"s_sub_u32 s25, {NS}, s26")
    a(f"s_mov_b32 s24, {G}")
    a(f"s_lshl_b32 s23, s20, 10")
    dma_offsets(W, vDW, ndw); dma_offsets(X, vDX, ndx)
    a("s_waitcnt lgkmcnt(0)")
    def issue(tag):
        for i in range(ndw):
            a(f"s_add_u32 m0, s23, {X.bytes + i*NL*1024}")
            a(f"buffer_load_dwordx4 v{vDW+i}, s[8:11], s22 offen lds")
        for i in range(ndx):
            a(f"s_add_u32 m0, s23, {i*NL*1024}")
            a(f"buffer_load_dwordx4 v{vDX+i}, s[4:7], s21 offen lds")
        a(f"s_add_u32 s21, s21, {X.adv}"); a(f"s_add_u32 s22, s22, {W.adv}")
        a("s_sub_u32 s25, s25, 1")
        a("s_cmp_eq_u32 s25, 0")
        a(f"s_cselect_b32 s30, {NS*X.adv}, 0"); a(f"s_cselect_b32 s31, {NS*W.adv}, 0"); a(f"s_cselect_b32 s25, {NS}, s25")
        a("s_sub_u32 s21, s21, s30"); a("s_sub_u32 s22, s22, s31")
        a("s_sub_u32 s24, s24, 1")
        if NP > 1:
            a(f"s_cmp_eq_u32 s24, {NS}")
            a("s_cselect_b32 s8, s40, s8"); a("s_cselect_b32 s9, s41, s9")
        a("s_cmp_eq_u32 s24, 0")
        a(f"s_cselect_b32 s21, {OOB}, s21"); a(f"s_cselect_b32 s22, {OOB}, s22"); a(f"s_cselect_b32 s25, 0x7fff, s25"); a("s_cselect_b32 s24, 0x7fff, s24")
        a(f"s_add_u32 s23, s23, {slot}"); a(f"s_sub_u32 s30, s23, {lds}"); a(f"s_cmp_ge_u32 s23, {lds}"); a("s_cselect_b32 s23, s30, s23")
    a(f"s_mov_b32 s28, {R}")
    a.label(f"L_lpre_{name}")
    issue("pre")
    a(f"s_cmp_lg_u32 s28, {R}")
    a(f"s_cbranch_scc1 L_lpre2_{name}")
    a("s_waitcnt vmcnt(0)")
    a("s_barrier")
    a.label(f"L_lpre2_{name}")
    a("s_sub_u32 s28, s28, 1"); a("s_cmp_lg_u32 s28, 0"); a(f"s_cbranch_scc1 L_lpre_{name}")
    a(f"s_mov_b32 s28, {G}")
    a.label(f"L_lloop_{name}")
    a(f"s_waitcnt vmcnt({(R-2)*nd})")
    a("s_barrier")
    if "nodma" not in ABL: issue("loop")
    a("s_sub_u32 s28, s28, 1"); a("s_cmp_lg_u32 s28, 0"); a(f"s_cbranch_scc1 L_lloop_{name}")
    if post and post.get("loader"): post["loader"](a)
    a("s_endpgm")
    a.label(f"L_cons_{name}")
    assert wx & (wx - 1) == 0
    a(f"s_and_b32 s28, s20, {wx-1}")
    a(f"s_lshr_b32 s29, s20, {wx.bit_length()-1}")
    def read_base(op, vR, swv, f, region):
        if op.mode == "R":
            a(f"s_mul_i32 s30, s{swv}, {f*4096}")
            a(f"v_and_b32 v{vT0}, 31, v{vLane}")
            a(f"v_bfe_u32 v{vT1}, v{vLane}, 1, 3")
            a(f"v_lshrrev_b32 v{vT2}, 5, v{vLane}")
            a(f"v_lshlrev_b32 v{vT0}, 7, v{vT0}")
            a(f"v_add_u32 v{vT0}, s30, v{vT0}")
            for ks in range(4):
                a(f"v_add_u32 v{vT3}, {2*ks}, v{vT2}")
                a(f"v_xor_b32 v{vT3}, v{vT3}, v{vT1}")
                a(f"v_lshl_add_u32 v{vR+ks}, v{vT3}, 4, v{vT0}")
                if region: a(f"v_add_u32 v{vR+ks}, {region}, v{vR+ks}")
        elif op.mode == "T":
            mul = (2 if op.korder == "nat" else 1) * op.nblk * 256
            a(f"s_mul_i32 s30, s{swv}, {f*256}")
            if region: a(f"s_add_u32 s30, s30, {region}")
            a(f"v_lshrrev_b32 v{vT0}, 5, v{vLane}")
            a(f"v_mul_u32_u24 v{vT0}, {mul}, v{vT0}")
            a(f"v_bfe_u32 v{vT1}, v{vLane}, 2, 2")
            a(f"v_lshl_add_u32 v{vT0}, v{vT1}, 6, v{vT0}")
            a(f"v_bfe_u32 v{vT1}, v{vLane}, 4, 1")
            a(f"v_lshl_add_u32 v{vT0}, v{vT1}, 5, v{vT0}")
            a(f"v_and_b32 v{vT1}, 3, v{vLane}")
            a(f"v_lshl_add_u32 v{vT0}, v{vT1}, 3, v{vT0}")
            a(f"v_add_u32 v{vR}, s30, v{vT0}")
        else:
            a(f"s_mul_i32 s30, s{swv}, {f*4096}")
            if region: a(f"s_add_u32 s30, s30, {region}")
            a(f"v_lshlrev_b32 v{vT0}, 4, v{vLane}")
            a(f"v_add_u32 v{vR}, s30, v{vT0}")
    read_base(X, vRX, 28, fx, 0); read_base(W, vRW, 29, fw, X.bytes)
    def reads(op, vC, vF, f, ks, par):
        L = []
        for j in range(f):
            d = vF + (par * f + j) * 4
            if op.mode == "R": L.append(f"ds_read_b128 v[{d}:{d+3}], v{vC+ks} offset:{j*4096}")
            elif op.mode == "F": L.append(f"ds_read_b128 v[{d}:{d+3}], v{vC} offset:{(j*4+ks)*1024}")
            else:
                st = 1 if op.korder == "nat" else 2
                for q in range(2):
                    off = (4 * ks + q * st) * op.nblk * 256 + j * 256
                    L.append(f"ds_read_b64_tr_b16 v[{d+2*q}:{d+2*q+1}], v{vC} offset:{off}")
        return L
    def all_reads(ks, par):
        rx = reads(X, vCX, vFX, fx, ks, par); rw = reads(W, vCW, vFW, fw, ks, par)
        nx = len(rx) // fx; nwr = len(rw) // fw
        out = rx[:nx] + rw[:nwr] + rw[nwr:] + rx[nx:]
        if "noread" in ABL: out = ["s_nop 0"]
        return out
    def set_cur():
        return [f"v_add_u32 v{vCX+k}, s24, v{vRX+k}" for k in range(nrx)] + [f"v_add_u32 v{vCW}, s24, v{vRW}"]
    def mfmas(par, x_is_row):
        L = []
        for ix in range(fx):
            for iw in range(fw):
                c = vAcc + (ix * fw + iw) * 16
                xr = vFX + (par * fx + ix) * 4; wr = vFW + (par * fw + iw) * 4
                A, B = (xr, wr) if x_is_row else (wr, xr)
                L.append(f"v_mfma_f32_32x32x16_bf16 v[{c}:{c+15}], v[{A}:{A+3}], v[{B}:{B+3}], v[{c}:{c+15}]")
        if "nomfma" in ABL: L = ["s_nop 0"] * len(L)
        return L
    a("s_mov_b32 s24, 0")
    for t in set_cur(): a(t)
    if pre: pre(a, dict(vLane=vLane, vFree=vFX, vFreeEnd=vEnd, lds=lds))
    for r in range(vAcc, vEnd): a(f"v_mov_b32 v{r}, 0")
    stamp(a, 2)
    a("s_barrier")
    stamp(a, 3)
    for t in all_reads(0, 0): a(t)
    nm = fx * fw
    for pi, ph in enumerate(phases):
        a(f"s_mov_b32 s25, {NS}")
        a(".p2align 3")
        a.label(f"L_loop{pi}_{name}")
        for ks in range(4):
            par = ks & 1
            M = mfmas(par, ph.x_is_row)
            a("s_waitcnt lgkmcnt(0)")
            if ks < 3:
                F = all_reads(ks + 1, par ^ 1)
                per = -(-len(F) // max(1, min(nm - 1, 3)))
                for t in interleave(M, F, per): a(t)
            else:
                prel = [f"s_add_u32 s24, s24, {slot}", f"s_cmp_eq_u32 s24, {lds}", "s_cselect_b32 s24, 0, s24"] + set_cur()
                a(M[0])
                for t in prel: a(t)
                nb = 2 if nm > 3 else 1
                for t in M[1:nb]: a(t)
                a("s_barrier")
                rest = M[nb:]
                F = all_reads(0, par ^ 1)
                per = -(-len(F) // max(1, min(len(rest), 3)))
                seq = []; fi = 0
                for m in rest:
                    seq += F[fi:fi+per]; fi += per
                    seq.append(m)
                seq += F[fi:]
                for t in seq: a(t)
        a("s_sub_u32 s25, s25, 1")
        a("s_cmp_lg_u32 s25, 0")
        a(f"s_cbranch_scc1 L_loop{pi}_{name}")
        if pi == NP - 1: stamp(a, 4)
        ctx = dict(vAcc=vAcc, fx=fx, fw=fw, vLane=vLane, vT=vT0, vFree=vE, vFreeEnd=vE + 16, swx=28, sww=29)
        if pi == 1: a("s_mov_b32 s27, s36")
        ph.epilogue(a, ctx)
        if pi < NP - 1:
            for r in range(vAcc, vEnd): a(f"v_mov_b32 v{r}, 0")
    stamp(a, 5)
    if post and post.get("consumer"): post["consumer"](a, dict(vLane=vLane, vFree=vE, vFreeEnd=vEnd, lds=lds))
    stamp_flush(a, 8, 12)
    a.label(f"L_end_{name}")
    a("s_endpgm")
    text = a.finalize()
    return text, kd(name, vEnd), f"; @launch kernel={name} grid=({nwg},1,1) block=(512,1,1) lds={lds+lds_extra}"
```

```python
from asmlib import *
from gemm import srd, WS, ARG, SZ
import struct
def fb(x): return struct.unpack("<I", struct.pack("<f", x))[0]

def mod_kernel(name="mod_kernel"):
    a = Asm(); head(a, name)
    stamp(a, 0, real=True); stamp(a, 1)
    NWG = 108
    a(f"s_cmp_ge_u32 s2, {NWG}")
    a(f"s_cbranch_scc1 L_end_{name}")
    srd(a, 4, "wmod"); srd(a, 8, "c"); srd(a, 12, "ws")
    a("v_lshrrev_b32 v1, 2, v0")
    a("v_and_b32 v2, 3, v0")
    a("v_lshlrev_b32 v2, 4, v2")
    a("s_mov_b32 s20, 6912")
    a("v_mad_u32_u24 v3, v1, s20, v2")
    a("v_lshlrev_b32 v4, 1, v1")
    a("s_lshl_b32 s21, s2, 6")
    a("s_waitcnt lgkmcnt(0)")
    for i in range(9):
        a(f"buffer_load_ushort v{8+i}, v4, s[8:11], 0 offen offset:{128*i}")
    for i in range(9):
        a(f"s_add_u32 s22, s21, {64*6912*i}")
        a(f"buffer_load_dwordx4 v[{20+4*i}:{23+4*i}], v3, s[4:7], s22 offen")
    for k in range(8): a(f"v_mov_b32 v{60+k}, 0")
    a(f"s_mov_b32 s23, 0x{fb(-1.4426950408889634):08x}")
    a("s_waitcnt vmcnt(9)")
    for i in range(9):
        r = 8 + i
        a(f"v_lshlrev_b32 v{r}, 16, v{r}")
        a(f"v_mul_f32 v5, s23, v{r}")
        a("v_exp_f32 v5, v5")
        a("v_add_f32 v5, 1.0, v5")
        a("v_rcp_f32 v5, v5")
        a(f"v_mul_f32 v{r}, v{r}, v5")
        a(f"v_cvt_pk_bf16_f32 v{r}, v{r}, v{r}")
        a(f"v_lshlrev_b32 v{r}, 16, v{r}")
    for i in range(9):
        a(f"s_waitcnt vmcnt({8-i})")
        for k in range(4):
            w = 20 + 4 * i + k
            a(f"v_lshlrev_b32 v5, 16, v{w}")
            a(f"v_and_b32 v6, 0xffff0000, v{w}")
            a(f"v_fmac_f32 v{60+2*k}, v5, v{8+i}")
            a(f"v_fmac_f32 v{61+2*k}, v6, v{8+i}")
    a("v_lshlrev_b32 v5, 7, v1")
    a("v_lshl_add_u32 v5, v2, 1, v5")
    a("ds_write_b128 v5, v[60:63]")
    a("ds_write_b128 v5, v[64:67] offset:16")
    a("s_waitcnt lgkmcnt(0)")
    a("s_barrier")
    a("v_and_b32 v6, 31, v0")
    a("v_lshrrev_b32 v7, 5, v0")
    a("v_lshlrev_b32 v7, 10, v7")
    a("v_lshl_add_u32 v7, v6, 2, v7")
    for k in range(8): a(f"ds_read_b32 v{20+k}, v7 offset:{128*k}")
    a("s_waitcnt lgkmcnt(0)")
    for k in range(1, 8): a(f"v_add_f32 v20, v20, v{20+k}")
    a("s_barrier")
    a("v_lshlrev_b32 v7, 2, v0")
    a("ds_write_b32 v7, v20")
    a("s_waitcnt lgkmcnt(0)")
    a("s_barrier")
    a("v_lshlrev_b32 v7, 2, v6")
    for k in range(8): a(f"ds_read_b32 v{20+k}, v7 offset:{128*k}")
    a("s_waitcnt lgkmcnt(0)")
    for k in range(1, 8): a(f"v_add_f32 v20, v20, v{20+k}")
    a("v_cvt_pk_bf16_f32 v20, v20, v20")
    a("v_lshlrev_b32 v20, 16, v20")
    a("s_lshl_b32 s22, s2, 7")
    a(f"s_add_u32 s22, s22, {WS['MOD']}")
    a("v_cmp_gt_u32 vcc, 32, v0")
    a("s_and_saveexec_b64 s[24:25], vcc")
    a(f"s_cbranch_execz L_end_{name}")
    a("buffer_store_dword v20, v7, s[12:15], s22 offen")
    if STAMP["on"]:
        a("s_mov_b32 s20, 0")
        for i in range(2, 6): stamp(a, i)
    stamp_flush(a, 8, 12)
    a.label(f"L_end_{name}")
    a("s_endpgm")
    return a.finalize(), kd(name, 72), f"; @launch kernel={name} grid=({NWG},1,1) block=(256,1,1) lds=8192"

def row_reduce(a, v, t):
    for s in (8, 4, 2, 1):
        a(f"v_add_f32_dpp v{v}, v{v}, v{v} row_ror:{s} row_mask:0xf bank_mask:0xf")

def unpack(a, dst, src, n):
    for k in range(n):
        a(f"v_lshlrev_b32 v{dst+2*k}, 16, v{src+k}")
        a(f"v_and_b32 v{dst+2*k+1}, 0xffff0000, v{src+k}")

def rnd(a, r):
    a(f"v_cvt_pk_bf16_f32 v{r}, v{r}, v{r}")
    a(f"v_lshlrev_b32 v{r}, 16, v{r}")

def layernorm(a, X, t0, t1):
    a(f"v_add_f32 v{t0}, v{X}, v{X+1}")
    a(f"v_add_f32 v{t1}, v{X+2}, v{X+3}")
    for k in range(4, 36, 2):
        a(f"v_add_f32 v{t0}, v{t0}, v{X+k}")
        a(f"v_add_f32 v{t1}, v{t1}, v{X+k+1}")
    a(f"v_add_f32 v{t0}, v{t0}, v{t1}")
    row_reduce(a, t0, t1)
    a(f"v_mul_f32 v{t0}, s40, v{t0}")
    for k in range(36): a(f"v_sub_f32 v{X+k}, v{X+k}, v{t0}")
    a(f"v_mul_f32 v{t0}, v{X}, v{X}")
    a(f"v_mul_f32 v{t1}, v{X+1}, v{X+1}")
    for k in range(2, 36, 2):
        a(f"v_fmac_f32 v{t0}, v{X+k}, v{X+k}")
        a(f"v_fmac_f32 v{t1}, v{X+k+1}, v{X+k+1}")
    a(f"v_add_f32 v{t0}, v{t0}, v{t1}")
    row_reduce(a, t0, t1)
    a(f"v_mov_b32 v{t1}, s41")
    a(f"v_fmac_f32 v{t1}, s40, v{t0}")
    a(f"v_rsq_f32 v{t1}, v{t1}")
    for k in range(36): a(f"v_mul_f32 v{X+k}, v{X+k}, v{t1}")

def row_kernel(name, mode, S=4):
    a = Asm(); head(a, name)
    stamp(a, 0, real=True); stamp(a, 1)
    NWG = 128
    a(f"s_cmp_ge_u32 s2, {NWG}")
    a(f"s_cbranch_scc1 L_end_{name}")
    srd(a, 12, "ws")
    if mode != "fin": srd(a, 4, "x")
    if mode == "fin": srd(a, 4, "out"); srd(a, 8, "b2")
    a("v_lshrrev_b32 v1, 4, v0")
    a("v_and_b32 v2, 15, v0")
    a("v_lshlrev_b32 v3, 3, v2")
    a("s_mov_b32 s20, 1152")
    a("v_mad_u32_u24 v3, v1, s20, v3")
    a("v_lshlrev_b32 v4, 4, v2")
    a("s_mul_i32 s21, s2, 18432")
    a(f"s_mov_b32 s40, 0x{fb(1.0/576):08x}")
    a(f"s_mov_b32 s41, 0x{fb(1e-5):08x}")
    a("s_waitcnt lgkmcnt(0)")
    RAW = 8
    X = RAW + (S + 1) * 18 + 2
    X = (X + 3) // 4 * 4
    MA = X + 36; MB = MA + 36; MC = MB + 36
    nv = MC + 36
    def load_rows(dst, sb, soff):
        for i in range(9):
            a(f"buffer_load_dwordx2 v[{dst+2*i}:{dst+2*i+1}], v3, s[{sb}:{sb+3}], {soff} offen offset:{128*i}")
    def load_mod(dst, slot):
        a(f"s_mov_b32 s22, {WS['MOD'] + slot*576*4}")
        for i in range(9):
            a(f"buffer_load_dwordx4 v[{dst+4*i}:{dst+4*i+3}], v4, s[12:15], s22 offen offset:{256*i}")
    def store_rows(src, sb, soff):
        for i in range(9):
            d = RAW + 2 * i
            a(f"v_cvt_pk_bf16_f32 v{d}, v{src+4*i}, v{src+4*i+1}")
            a(f"v_cvt_pk_bf16_f32 v{d+1}, v{src+4*i+2}, v{src+4*i+3}")
            a(f"buffer_store_dwordx2 v[{d}:{d+1}], v3, s[{sb}:{sb+3}], {soff} offen offset:{128*i}")
    def sum_partials(dst):
        unpack(a, dst, RAW + 18, 18)
        for p in range(1, S):
            for k in range(18):
                src = RAW + 18 * (p + 1) + k
                a(f"v_lshlrev_b32 v5, 16, v{src}")
                a(f"v_and_b32 v6, 0xffff0000, v{src}")
                a(f"v_add_f32 v{dst+2*k}, v{dst+2*k}, v5")
                a(f"v_add_f32 v{dst+2*k+1}, v{dst+2*k+1}, v6")
    def modulate(Xr, Mc, Ms):
        for k in range(36):
            a(f"v_add_f32 v{Mc+k}, 1.0, v{Mc+k}")
            rnd(a, Mc + k)
        for k in range(36):
            a(f"v_fma_f32 v{Xr+k}, v{Xr+k}, v{Mc+k}, v{Ms+k}")
    if mode == "ln1":
        load_rows(RAW, 4, "s21")
        load_mod(MA, 1); load_mod(MB, 0)
        a("s_waitcnt vmcnt(18)")
        unpack(a, X, RAW, 18)
        layernorm(a, X, 5, 6)
        a("s_waitcnt vmcnt(0)")
        modulate(X, MA, MB)
        a(f"s_add_u32 s22, s21, {WS['H1']}")
        store_rows(X, 12, "s22")
    elif mode == "ln2":
        load_rows(RAW, 4, "s21")
        for p in range(S):
            a(f"s_add_u32 s22, s21, {WS['OP'] + p*2359296}")
            load_rows(RAW + 18 * (p + 1), 12, "s22")
        load_mod(MA, 2); load_mod(MB, 4); load_mod(MC, 3)
        a("s_waitcnt vmcnt(27)")
        sum_partials(X)
        a("s_waitcnt vmcnt(18)")
        for k in range(36):
            rnd(a, X + k)
            a(f"v_mul_f32 v{X+k}, v{X+k}, v{MA+k}")
            rnd(a, X + k)
        unpack(a, MA, RAW, 18)
        for k in range(36):
            a(f"v_add_f32 v{X+k}, v{X+k}, v{MA+k}")
            rnd(a, X + k)
        a(f"s_add_u32 s22, s21, {WS['X1']}")
        store_rows(X, 12, "s22")
        layernorm(a, X, 5, 6)
        a("s_waitcnt vmcnt(9)")
        modulate(X, MB, MC)
        layernorm(a, X, 5, 6)
        a(f"s_add_u32 s22, s21, {WS['H2']}")
        store_rows(X, 12, "s22")
    else:
        a(f"s_add_u32 s22, s21, {WS['X1']}")
        load_rows(RAW, 12, "s22")
        for p in range(S):
            a(f"s_add_u32 s22, s21, {WS['YP'] + p*2359296}")
            load_rows(RAW + 18 * (p + 1), 12, "s22")
        load_mod(MA, 5)
        a("s_lshl_b32 s23, s2, 5")
        a("v_lshlrev_b32 v7, 1, v1")
        a("buffer_load_ushort v7, v7, s[8:11], s23 offen")
        a("s_waitcnt vmcnt(10)")
        sum_partials(X)
        a("s_waitcnt vmcnt(0)")
        a("v_lshlrev_b32 v7, 16, v7")
        for k in range(36):
            rnd(a, X + k)
            a(f"v_add_f32 v{X+k}, v{X+k}, v7")
            rnd(a, X + k)
            a(f"v_mul_f32 v{X+k}, v{X+k}, v{MA+k}")
            rnd(a, X + k)
        unpack(a, MA, RAW, 18)
        for k in range(36):
            a(f"v_add_f32 v{X+k}, v{X+k}, v{MA+k}")
        store_rows(X, 4, "s21")
    if STAMP["on"]:
        a("v_lshrrev_b32 v1, 6, v0")
        a("v_readfirstlane_b32 s20, v1")
        for i in range(2, 6): stamp(a, i)
    stamp_flush(a, 8, 12)
    a.label(f"L_end_{name}")
    a("s_endpgm")
    return a.finalize(), kd(name, nv), f"; @launch kernel={name} grid=({NWG},1,1) block=(256,1,1) lds=0"
```

```python
import sys, struct
from asmlib import *
from gemm import *
from small import *
from attn import *
from gemm2 import *
NOSTAG = '--nostag' in sys.argv
def fb(x): return struct.unpack("<I", struct.pack("<f", x))[0]

def dec_proj(xbase, xrowbytes, outbase, out2=0):
    def f(a):
        a("s_and_b32 s30, s2, 7"); a("s_lshr_b32 s31, s2, 3")
        a("s_lshr_b32 s32, s31, 2")
        a("s_and_b32 s31, s31, 3"); a("s_lshl_b32 s30, s30, 2"); a("s_add_u32 s30, s30, s31")
        a("s_lshl_b32 s26, s31, 1"); a("s_add_u32 s26, s26, s32"); a("s_and_b32 s26, s26, 7")
        if NOSTAG: a("s_mov_b32 s26, 0")
        a(f"s_mul_i32 s21, s32, {256*xrowbytes}")
        if xbase: a(f"s_add_u32 s21, s21, {xbase}")
        a("s_lshl_b32 s22, s30, 8")
        a("s_lshl_b32 s27, s30, 19"); a("s_lshl_b32 s32, s32, 16"); a("s_add_u32 s27, s27, s32")
        a(f"s_add_u32 s36, s27, {out2}")
        a(f"s_add_u32 s27, s27, {outbase}")
    return f

def dec_split(xbase, xblkstride, xblks, ksteps, wld, wtile_bytes, w_is_mt, outbase):
    def f(a):
        a("s_and_b32 s30, s2, 7"); a("s_lshr_b32 s31, s2, 3")
        a("s_mul_i32 s32, s31, 171"); a("s_lshr_b32 s32, s32, 9")
        a("s_mul_i32 s33, s32, 3"); a("s_sub_u32 s33, s31, s33")
        a("s_lshl_b32 s26, s32, 1"); a("s_mul_i32 s31, s33, 5"); a("s_add_u32 s26, s26, s31"); a("s_and_b32 s26, s26, 15")
        if NOSTAG: a("s_mov_b32 s26, 0")
        a("s_and_b32 s31, s30, 1"); a("s_lshl_b32 s31, s31, 3"); a("s_add_u32 s32, s32, s31")
        a("s_lshr_b32 s30, s30, 1")
        xs, wsx = ("s32", "s33") if w_is_mt else ("s33", "s32")
        a(f"s_mul_i32 s21, {xs}, {xblks*xblkstride}")
        a(f"s_mul_i32 s31, s30, {ksteps*1024}")
        a("s_add_u32 s21, s21, s31"); a(f"s_add_u32 s21, s21, {xbase}")
        a(f"s_mul_i32 s22, s30, {ksteps*16*wld}")
        a(f"s_mul_i32 s31, {wsx}, {wtile_bytes}")
        a("s_add_u32 s22, s22, s31")
        a("s_mul_i32 s27, s30, 2359296")
        a(f"s_mul_i32 s31, s32, {128*1152}"); a("s_add_u32 s27, s27, s31")
        a("s_mul_i32 s31, s33, 384"); a("s_add_u32 s27, s27, s31")
        a(f"s_add_u32 s27, s27, {outbase}")
    return f

def dec_mlp1(a):
    a("s_and_b32 s30, s2, 7"); a("s_lshr_b32 s31, s2, 3")
    a("s_mul_i32 s30, s30, 27"); a("s_add_u32 s30, s30, s31")
    a("s_mul_i32 s26, s30, 11"); a("s_and_b32 s26, s26, 31")
    if NOSTAG: a("s_mov_b32 s26, 0")
    a("s_mul_i32 s31, s30, 171"); a("s_lshr_b32 s31, s31, 10")
    a("s_mul_i32 s32, s31, 6"); a("s_sub_u32 s32, s30, s32")
    a("s_mul_i32 s21, s32, 192"); a(f"s_add_u32 s21, s21, {WS['H2']}")
    a("s_lshl_b32 s22, s31, 8")
    a("s_mov_b32 s33, s22")
    a(f"s_mul_i32 s27, s32, {3*294912}"); a("s_lshl_b32 s31, s31, 13"); a("s_add_u32 s27, s27, s31")
    a(f"s_add_u32 s27, s27, {WS['U']}")
assert all((r*171)>>9 == r//3 for r in range(24)) and all((r*171)>>10 == r//6 for r in range(216))

STAMP['on'] = '--stamp' in sys.argv
for x in sys.argv:
    if x.startswith('--abl='): ABL.update(x[6:].split(','))
QSCALE = 1.4426950408889634 / (128 ** 0.5)
ks = []
ks.append(mod_kernel())
ks.append(row_kernel("ln1_kernel", "ln1"))
ks.append(gemm2_kernel("kvproj_kernel", Operand("R", 256, "ckv", ld=1024), Operand("T", 128, None, ld=8192), 2, 2, 8, 3,
                      [Phase(False, ep_frag(8192, 2048, 1024), "wuk"), Phase(True, ep_frag(8192, 1024, 4096), "wuv")],
                      dec_proj(0, 1024, WS["KF"], WS["VF"]), 256))
ks.append(gemm2_kernel("qproj_kernel", Operand("R", 256, "ws", ld=1152), Operand("T", 128, None, ld=8192), 2, 2, 9, 3,
                      [Phase(False, ep_frag(8192, 2048, 1024, scale=fb(QSCALE)), "wq")], dec_proj(WS["H1"], 1152, WS["QF"]), 256))
ks.append(attn_kernel())
ks.append(gemm2_kernel("oproj_kernel", Operand("F", 128, "ws", blkstride=262144), Operand("T", 192, None, ld=1152, korder="d"), 2, 2, 16, 3,
                      [Phase(False, ep_rows(1152, False), "wo")], dec_split(WS["CTX"], 262144, 4, 64, 1152, 384, True, WS["OP"]), 192))
ks.append(row_kernel("ln2_kernel", "ln2"))
ks.append(gemm2_kernel("mlp1_kernel", Operand("T", 96, "ws", ld=1152), Operand("T", 128, None, ld=9216), 1, 4, 32, 4,
                      [Phase(False, ep_frag(294912, 2048, 1024, gelu_bias=True), "w1")], dec_mlp1, 216, extra_srd="b1"))
ks.append(gemm2_kernel("mlp2_kernel", Operand("F", 192, "ws", blkstride=294912), Operand("T", 128, None, ld=4096, korder="d"), 2, 2, 18, 3,
                      [Phase(True, ep_rows(1152, True), "w2")], dec_split(WS["U"], 294912, 6, 72, 4096, 256, False, WS["YP"]), 192))
ks.append(row_kernel("fin_kernel", "fin"))

hdr = open("adaLN_cond__compressed_kv_cla__mixer_token_mlp__prompt.s.ref").read().split("; Override")[0]
out = hdr + "\n".join(k[2] for k in ks) + '\n.amdgcn_target "amdgcn-amd-amdhsa--gfx950"\n.text\n' + "".join(k[0] for k in ks) + \
      '.section .rodata,"a"\n' + "".join(k[1] for k in ks)
dst = sys.argv[1] if len(sys.argv) > 1 else "adaLN_cond__compressed_kv_cla__mixer_token_mlp__prompt.s"
open(dst, "w").write(out)
print("wrote", dst, len(out), "bytes")
```
